```python
import torch

def _softmax(x, axis=-1):
    return torch.softmax(x, dim=axis)
def _gelu(x):
    return torch.nn.functional.gelu(x, approximate="tanh")
def _silu(x):
    return torch.nn.functional.silu(x)
def _sigmoid(x):
    return torch.sigmoid(x)
def _layernorm(x, axis=-1, eps=1e-5):
    m = x.mean(dim=axis, keepdim=True)
    v = x.var(dim=axis, keepdim=True, unbiased=False)
    return (x - m) / torch.sqrt(v + eps)
def _scatter_add(tgt, idx, src, axis=0):
    return tgt.clone().index_add_(axis, idx, src)
def _segment_sum(src, seg, n):
    out = torch.zeros((n,) + src.shape[1:], dtype=src.dtype)
    return out.index_add_(0, seg, src)
def _pad(x, pw):
    flat = tuple(v for pair in reversed(pw) for v in pair)
    return torch.nn.functional.pad(x, flat)

kernel_name = 'gather_scatter__mpnn_edge_mlp__graph'

def setup_inputs():

    _w = (lambda a: (lambda t: t.to(torch.bfloat16) if t.is_floating_point() else t)(torch.as_tensor(a)))
    N, deg, D, De = 10000, 16, 128, max(4, 1)
    E = N * deg
    return {
        "x": _w((lambda *s: torch.randn(*s, dtype=torch.bfloat16) * 0.05)(N, D)),
        "e_attr": _w((lambda *s: torch.randn(*s, dtype=torch.bfloat16) * 0.4)(E, De)),
        "src": _w((lambda lo, hi, *s: torch.randint(lo, hi, s))(0, N, E).to(torch.int64)),
        "dst": _w((lambda lo, hi, *s: torch.randint(lo, hi, s))(0, N, E).to(torch.int64)),
        "w_msg": _w((lambda *s: torch.randn(*s, dtype=torch.bfloat16) * 0.4)(2 * D + De, D)),
        "w_upd": _w((lambda *s: torch.randn(*s, dtype=torch.bfloat16) * 0.05)(2 * D, D)),
    }

def reference(x, e_attr, src, dst, w_msg, w_upd):
    N, D = x.shape
    m_in = torch.concatenate([x[src], x[dst], e_attr], axis=-1)
    msg = _silu(m_in @ w_msg)
    agg = _segment_sum(msg, dst, N)
    return _silu(torch.concatenate([x, agg], axis=-1) @ w_upd)
```

```python
import re
TRANS = ("v_exp_f32", "v_rcp_f32", "v_log_f32", "v_rsq_f32", "v_sqrt_f32")
def regs(tok):
    tok = tok.strip()
    m = re.fullmatch(r"([vsa])\[(\d+):(\d+)\]", tok)
    if m: return {(m.group(1), i) for i in range(int(m.group(2)), int(m.group(3)) + 1)}
    m = re.fullmatch(r"([vsa])(\d+)", tok)
    if m: return {(m.group(1), int(m.group(2)))}
    if tok == "vcc": return {("s", "vcc")}
    if tok == "m0": return {("s", "m0")}
    if tok == "exec": return {("s", "exec")}
    return set()
def parse(line):
    s = line.split(";")[0].strip()
    if not s or s.endswith(":") or s.startswith("."): return None
    p = s.split(None, 1)
    op = p[0]
    ops = []
    if len(p) > 1:
        for t in p[1].split(","):
            ops.append(t.strip().split()[0] if t.strip() else "")
    d = dict(op=op, text=s, w=set(), r=set(), kind="other", ops=ops)
    if op.startswith("v_mfma"):
        d["kind"] = "mfma"; d["w"] = regs(ops[0]); d["ab"] = regs(ops[1]) | regs(ops[2]); d["c"] = regs(ops[3]); d["r"] = d["ab"] | d["c"]
    elif op.startswith("v_"):
        d["kind"] = "valu"; d["w"] = regs(ops[0])
        for o in ops[1:]: d["r"] |= regs(o)
        if "dpp" in op or op.startswith(("v_fmac", "v_mac")): d["r"] |= d["w"]
        if op.startswith("v_permlane"): d["r"] |= d["w"]; d["w"] |= regs(ops[1])
    elif op.startswith("buffer_") or op.startswith("global_"):
        d["kind"] = "vmem"
        lds = " lds" in s
        if "load" in op and not lds:
            d["w"] = regs(ops[0])
            for o in ops[1:]: d["r"] |= regs(o)
        else:
            for o in ops: d["r"] |= regs(o)
        d["lds"] = lds
        if "store" in op and ("x3" in op or "x4" in op): d["wide"] = regs(ops[0])
    elif op.startswith("ds_"):
        d["kind"] = "ds"
        if "read" in op or "rtn" in op or "bpermute" in op:
            d["w"] = regs(ops[0])
            for o in ops[1:]: d["r"] |= regs(o)
        else:
            for o in ops: d["r"] |= regs(o)
            if "b128" in op or "b96" in op: d["wide"] = regs(ops[1])
    elif op.startswith("s_"):
        d["kind"] = "salu"
        if ops and not op.startswith(("s_cmp", "s_waitcnt", "s_nop", "s_cbranch", "s_branch", "s_setprio", "s_barrier")):
            d["w"] = regs(ops[0])
    return d
def need(p, c):
    n = 0
    pk, ck = p["kind"], c["kind"]
    if pk == "valu":
        sw = {x for x in p["w"] if x[0] == "s"}
        vw = {x for x in p["w"] if x[0] != "s"}
        if sw & c["r"]:
            if ck in ("valu", "mfma"): n = max(n, 2)
            if ck == "vmem": n = max(n, 5)
        if vw & c["r"]:
            if c["op"].startswith(("v_readfirstlane", "v_readlane")): n = max(n, 1)
            if "dpp" in c["op"] or c["op"].startswith("v_permlane"): n = max(n, 2)
            if ck == "mfma": n = max(n, 2)
            if p["op"].startswith(TRANS) and ck == "valu" and not c["op"].startswith(TRANS): n = max(n, 1)
    if pk == "salu" and ("s", "m0") in p["w"] and c.get("lds"): n = max(n, 1)
    if pk == "mfma":
        big = 12 if "32x32" in p["op"] else 8
        if ck in ("valu", "vmem", "ds") and (p["w"] & (c["r"] | c["w"])): n = max(n, big)
        if ck == "mfma":
            if p["w"] & c["ab"]: n = max(n, big)
            if (p["w"] & c["c"]) and p["w"] != c["c"]: n = max(n, big)
        if ck == "valu" and (p["c"] & c["w"]): n = max(n, 7)
    if "wide" in p and ck == "valu" and (p["wide"] & c["w"]): n = max(n, 2)
    return n
def pad(lines, verbose=False):
    out = []; hist = []
    for ln in lines:
        c = parse(ln)
        if c is None:
            out.append(ln); continue
        req = 0
        for p, dist in hist:
            req = max(req, need(p, c) - dist)
        if req > 0:
            if verbose: print("pad", req, "before", c["text"])
            r = req
            while r > 0:
                k = min(r, 8); out.append(f"    s_nop {k-1}"); r -= k
            hist = [(p, d + req) for p, d in hist]
        out.append(ln)
        st = 1
        if c["op"] == "s_nop": st = int(c["ops"][0]) + 1
        hist = [(p, d + st) for p, d in hist if d + st < 16]
        hist.append((c, 0))
        if c["op"] in ("s_endpgm", "s_branch"): pass
    return out
```

```python
import sys, struct, os
sys.path.insert(0, os.path.dirname(os.path.abspath(__file__)))
import haz
VERB = bool(os.environ.get('VERB'))

NAME = "gather_scatter__mpnn_edge_mlp__graph"
def f2u(x): return struct.unpack("<I", struct.pack("<f", x))[0]
NLOG2E = f2u(-1.4426950408889634)
NLN2 = f2u(-0.6931471805599453)

PW = 4096
REC = 0x280000
TAB = 0x460000
WF = 0x480000
WS_SIZE = 0x4A0000
NCH = 64
CHE = 2500
NG = 157
K1_GRID = NCH + NG + 3

class A:
    def __init__(s): s.l = []
    def __call__(s, t):
        for x in t.strip("\n").split("\n"):
            s.l.append("    " + x.strip() if not x.strip().endswith(":") else x.strip())
    def text(s): return "\n".join(haz.pad(s.l, VERB)) + "\n"

def srd(a, d, b, n):
    a(f"s_mov_b32 s{d}, s{b}\ns_mov_b32 s{d+1}, s{b+1}\ns_mov_b32 s{d+2}, {n}\ns_mov_b32 s{d+3}, 0x00020000")

def vr(b, n): return f"v[{b}:{b+n-1}]"

def k1(a):
    a(f"""
s_cmp_ge_u32 s2, {K1_GRID}
s_cbranch_scc1 K1_END
s_load_dwordx16 s[8:23], s[0:1], 0
s_load_dwordx2 s[24:25], s[0:1], 64
s_cmp_lt_u32 s2, {NCH}
s_cbranch_scc1 K1_SORT
""")
    a(f"""
v_lshrrev_b32 v2, 6, v0
v_and_b32 v1, 63, v0
s_nop 0
v_readfirstlane_b32 s27, v2
s_cmp_ge_u32 s27, 8
s_cbranch_scc1 K1_END
s_and_b32 s26, s27, 3
s_sub_u32 s3, s2, {NCH}
s_mov_b32 s44, 4
s_mov_b32 s45, 2
s_mov_b32 s46, 3
s_mov_b32 s47, 3
s_movk_i32 s48, 1024
s_mov_b32 s49, 0
s_cmp_eq_u32 s3, {NG}
s_cselect_b32 s44, 2, s44
s_cselect_b32 s45, 3, s45
s_cselect_b32 s46, 4, s46
s_cselect_b32 s49, 0x8000, s49
s_cmp_eq_u32 s3, {NG+2}
s_cselect_b32 s47, 2, s47
s_cselect_b32 s48, 0x800, s48
s_cselect_b32 s49, 0x8000, s49
v_lshrrev_b32 v2, 4, v1
v_and_b32 v3, 15, v1
v_lshlrev_b32 v4, 2, v2
v_xor_b32 v4, v3, v4
v_lshlrev_b32 v4, 4, v4
v_lshl_or_b32 v4, v2, 8, v4
s_lshl_b32 s4, s27, 3
v_add_u32 v5, s4, v2
v_and_b32 v6, 15, v5
v_xor_b32 v6, v3, v6
v_lshlrev_b32 v6, 4, v6
v_lshl_or_b32 v6, v5, 8, v6
s_lshl_b32 s5, s3, 14
v_add_u32 v6, s5, v6
v_xor_b32 v7, 64, v6
s_lshl_b32 s6, s27, 12
s_add_u32 s49, s49, s6
s_waitcnt lgkmcnt(0)
""")
    srd(a, 28, 8, 2560000)
    srd(a, 32, 24, WS_SIZE)
    a(f"""
s_cmp_gt_u32 s3, {NG}
s_cselect_b32 s36, s18, s16
s_cselect_b32 s37, s19, s17
s_mov_b32 s38, 65536
s_mov_b32 s39, 0x00020000
s_mov_b32 m0, s6
s_lshl_b32 s7, s27, 11
s_add_u32 s7, s7, 32768
buffer_load_dwordx4 v4, s[36:39], s49 offen lds
buffer_load_dwordx4 v4, s[36:39], s49 offen offset:1024 lds
buffer_load_dwordx4 v4, s[36:39], s49 offen offset:2048 lds
buffer_load_dwordx4 v4, s[36:39], s49 offen offset:3072 lds
s_mov_b32 m0, s7
s_nop 0
buffer_load_dwordx4 v6, s[28:31], 0 offen lds
buffer_load_dwordx4 v7, s[28:31], 0 offen offset:1024 lds
v_and_b32 v8, 1, v1
v_lshlrev_b32 v8, s44, v8
v_bfe_u32 v9, v1, 1, 1
v_lshlrev_b32 v9, s45, v9
v_or_b32 v8, v8, v9
v_bfe_u32 v9, v1, 4, 1
v_lshlrev_b32 v9, s46, v9
v_or_b32 v8, v8, v9
v_bfe_u32 v10, v1, 2, 2
v_lshrrev_b32 v11, 5, v1
v_lshlrev_b32 v12, s47, v11
v_add_u32 v12, v12, v10
v_lshrrev_b32 v9, 3, v8
s_lshl_b32 s4, s26, 2
v_add_u32 v9, s4, v9
v_lshlrev_b32 v10, 2, v10
v_xor_b32 v9, v9, v10
v_lshlrev_b32 v9, 4, v9
v_lshl_or_b32 v9, v12, 8, v9
v_and_b32 v8, 4, v8
v_lshl_or_b32 v8, v8, 1, v9
v_add_u32 v9, s48, v8
v_and_b32 v12, 31, v1
v_xor_b32 v13, v11, v3
v_lshlrev_b32 v13, 4, v13
v_lshl_or_b32 v13, v12, 8, v13
s_lshr_b32 s4, s27, 2
s_lshl_b32 s4, s4, 13
s_add_u32 s4, s4, 32768
v_add_u32 v13, s4, v13
s_waitcnt vmcnt(0)
s_barrier
""")
    for s in range(8):
        a(f"ds_read_b64_tr_b16 v[{32+4*s}:{33+4*s}], v8 offset:{4096*s}")
        a(f"ds_read_b64_tr_b16 v[{34+4*s}:{35+4*s}], v9 offset:{4096*s}")
    a(f"""
s_cmp_ge_u32 s3, {NG}
s_cbranch_scc1 K1_PREP
""")
    for s in range(8):
        if s == 0:
            a(f"ds_read_b128 v[64:67], v13")
        else:
            a(f"v_xor_b32 v14, {32*s}, v13\nds_read_b128 v[{64+4*s}:{67+4*s}], v14")
    a(f"""
s_lshl_b32 s4, s27, 11
s_add_u32 s4, s4, 49152
v_bfe_u32 v14, v1, 2, 2
v_lshlrev_b32 v15, 1, v11
v_xor_b32 v14, v14, v15
v_lshlrev_b32 v14, 4, v14
v_lshl_or_b32 v14, v12, 6, v14
v_add_u32 v14, s4, v14
v_xor_b32 v15, 16, v14
v_and_b32 v2, 3, v2
v_and_b32 v3, 3, v1
v_xor_b32 v2, v2, v3
v_lshlrev_b32 v2, 4, v2
v_lshrrev_b32 v4, 2, v1
v_lshl_or_b32 v2, v4, 6, v2
v_add_u32 v2, s4, v2
v_lshlrev_b32 v3, 4, v3
v_lshl_or_b32 v3, v4, 8, v3
s_lshr_b32 s4, s27, 2
s_lshl_b32 s4, s4, 13
s_add_u32 s4, s4, s5
s_lshl_b32 s6, s26, 6
s_add_u32 s4, s4, s6
s_add_u32 s4, s4, {PW}
v_add_u32 v3, s4, v3
v_add_u32 v4, 0x1000, v3
s_mov_b32 s6, 0x{NLOG2E:08x}
""")
    for s in range(8):
        a(f"s_waitcnt lgkmcnt({7-s})")
        c = "0" if s == 0 else "v[16:31]"
        a(f"v_mfma_f32_32x32x16_bf16 v[16:31], {vr(32+4*s,4)}, {vr(64+4*s,4)}, {c}")
    a("s_nop 7\ns_nop 7")
    for r in range(16):
        a(f"v_mul_f32 v{16+r}, s6, v{16+r}")
    for r in range(8):
        a(f"v_cvt_pk_bf16_f32 v{32+r}, v{16+2*r}, v{17+2*r}")
    a(f"""
ds_write_b128 v14, v[32:35]
ds_write_b128 v15, v[36:39]
s_waitcnt lgkmcnt(0)
ds_read_b128 v[40:43], v2
ds_read_b128 v[44:47], v2 offset:1024
s_waitcnt lgkmcnt(1)
buffer_store_dwordx4 v[40:43], v3, s[32:35], 0 offen
s_waitcnt lgkmcnt(0)
buffer_store_dwordx4 v[44:47], v4, s[32:35], 0 offen
s_endpgm
K1_PREP:
s_cmp_ge_u32 s27, 4
s_cbranch_scc1 K1_END
s_sub_u32 s4, s3, {NG}
s_lshl_b32 s4, s4, 15
s_lshl_b32 s6, s26, 13
s_add_u32 s4, s4, s6
s_add_u32 s4, s4, {WF}
v_lshlrev_b32 v2, 4, v1
v_add_u32 v2, s4, v2
v_add_u32 v3, 0x1000, v2
s_waitcnt lgkmcnt(0)
""")
    for s in range(8):
        a(f"buffer_store_dwordx4 {vr(32+4*s,4)}, v{2+(s>>2)}, s[32:35], 0 offen offset:{1024*(s&3)}")
    a("s_endpgm")
    a(f"""
K1_SORT:
s_mul_i32 s3, s2, {CHE*4}
v_lshlrev_b32 v1, 4, v0
v_add_u32 v1, s3, v1
v_lshlrev_b32 v2, 1, v1
v_lshlrev_b32 v3, 2, v0
v_mov_b32 v30, 0
v_mov_b32 v31, 1
ds_write_b32 v3, v30
s_movk_i32 s4, 625
v_cmp_gt_u32 vcc, s4, v0
s_mov_b64 s[26:27], vcc
s_movk_i32 s5, 3355
s_mov_b32 s6, 1280180
s_waitcnt lgkmcnt(0)
""")
    srd(a, 28, 14, 640000)
    srd(a, 36, 12, 640000)
    srd(a, 40, 10, 1280000)
    a(f"""
s_mov_b64 exec, s[26:27]
buffer_load_dwordx4 v[4:7], v1, s[28:31], 0 offen
buffer_load_dwordx4 v[8:11], v1, s[36:39], 0 offen
buffer_load_dwordx4 v[12:15], v2, s[40:43], 0 offen
buffer_load_dwordx4 v[24:27], v2, s[40:43], 0 offen offset:16
""")
    srd(a, 32, 24, WS_SIZE)
    a("s_barrier\ns_waitcnt vmcnt(3)")
    for i in range(4):
        a(f"""
v_mul_u32_u24 v{4+i}, s5, v{4+i}
v_lshrrev_b32 v{32+i}, 16, v{4+i}
v_lshlrev_b32 v{32+i}, 2, v{32+i}
ds_add_rtn_u32 v{36+i}, v{32+i}, v31
""")
    for i in range(4):
        a(f"""
v_and_b32 v{4+i}, 0xffff, v{4+i}
v_mul_hi_u32_u24 v{4+i}, s6, v{4+i}
v_and_b32 v40, 0x13, v{4+i}
v_lshlrev_b32 v40, 1, v40
v_and_or_b32 v40, v{4+i}, 8, v40
v_and_b32 v{4+i}, 4, v{4+i}
v_lshl_or_b32 v{4+i}, v{4+i}, 2, v40
""")
    recs = [22, 16, 46, 28]
    a("s_waitcnt vmcnt(2)")
    for i in range(4):
        a(f"v_lshl_or_b32 v{recs[i]}, v{8+i}, 8, v{4+i}")
    a(f"""
s_mov_b64 exec, -1
v_and_b32 v3, 63, v0
v_lshlrev_b32 v3, 5, v3
s_waitcnt lgkmcnt(0)
s_barrier
ds_read_b128 v[48:51], v3
ds_read_b128 v[52:55], v3 offset:16
s_waitcnt lgkmcnt(0)
""")
    for j in range(1, 8):
        a(f"v_add_u32 v{48+j}, v{48+j}, v{47+j}")
    a(f"""
v_mov_b32 v56, v55
s_nop 1
v_add_u32_dpp v56, v56, v56 row_shr:1 row_mask:0xf bank_mask:0xf bound_ctrl:0
s_nop 1
v_add_u32_dpp v56, v56, v56 row_shr:2 row_mask:0xf bank_mask:0xf bound_ctrl:0
s_nop 1
v_add_u32_dpp v56, v56, v56 row_shr:4 row_mask:0xf bank_mask:0xf bound_ctrl:0
s_nop 1
v_add_u32_dpp v56, v56, v56 row_shr:8 row_mask:0xf bank_mask:0xf bound_ctrl:0
s_nop 1
v_add_u32_dpp v56, v56, v56 row_bcast:15 row_mask:0xa bank_mask:0xf
s_nop 1
v_add_u32_dpp v56, v56, v56 row_bcast:31 row_mask:0xc bank_mask:0xf
v_sub_u32 v56, v56, v55
""")
    for j in range(1, 8):
        a(f"v_add_u32 v{56+j}, v56, v{47+j}")
    a(f"""
v_add_u32 v64, v56, v55
ds_write_b128 v3, v[56:59] offset:4096
ds_write_b128 v3, v[60:63] offset:4112
""")
    for j in range(8):
        a(f"v_lshl_or_b32 v{48+j}, v{57+j}, 16, v{56+j}")
    a(f"""
s_waitcnt lgkmcnt(0)
s_mov_b64 exec, s[26:27]
ds_read_b32 v4, v32 offset:4096
ds_read_b32 v5, v33 offset:4096
ds_read_b32 v6, v34 offset:4096
ds_read_b32 v7, v35 offset:4096
s_mul_i32 s3, s2, {CHE*12}
s_add_u32 s3, s3, {REC}
s_waitcnt vmcnt(0)
v_mov_b32 v20, v12
v_mov_b32 v21, v13
v_mov_b32 v44, v24
v_mov_b32 v45, v25
""")
    trip = [20, 14, 44, 26]
    for i in range(4):
        a(f"""
s_waitcnt lgkmcnt({3-i})
v_add_u32 v{4+i}, v{4+i}, v{36+i}
v_mul_u32_u24 v{4+i}, 12, v{4+i}
buffer_store_dwordx3 {vr(trip[i],3)}, v{4+i}, s[32:35], s3 offen
""")
    a(f"""
v_cmp_gt_u32 vcc, 64, v0
s_and_b64 exec, exec, vcc
s_cbranch_execz K1_END
s_lshl_b32 s3, s2, 11
s_add_u32 s3, s3, {TAB}
buffer_store_dwordx4 v[48:51], v3, s[32:35], s3 offen
buffer_store_dwordx4 v[52:55], v3, s[32:35], s3 offen offset:16
K1_END:
s_endpgm
""")

RING = 0; RB = 32768; IDX = 57344; XT = 61440; CNT = 69632; K2_LDS = 69648
CAP = 512
T0, T1, E, AGG, M, AP, AR, OH, ID, B2, XF, WU, RC = 16, 32, 48, 64, 80, 88, 96, 104, 112, 120, 128, 160, 224
vPA0, vPA1, vRA0, vRA1, vTR, vIX, vGC0, vGC1, vCUR, vEND, vWF, vH, vG0, vG1 = 2, 3, 4, 5, 6, 7, 8, 9, 10, 11, 12, 13, 14, 15
vRB = 240

def mfma(a, d, x, y, c=None):
    cc = "0" if c is None else vr(c, 16)
    a(f"v_mfma_f32_32x32x16_bf16 {vr(d,16)}, {vr(x,4)}, {vr(y,4)}, {cc}")

def k2_half(a, par, Tc, Tn, name):
    np_ = par ^ 1
    a(f"""
s_cmp_lg_u32 s50, 0
s_cbranch_scc1 {name}_W2
s_waitcnt vmcnt(6) lgkmcnt(0)
s_branch {name}_W3
{name}_W2:
s_waitcnt vmcnt(22) lgkmcnt(0)
{name}_W3:
""")
    if par == 1:
        a(f"""
v_xor_b32 v{vPA0}, 0x1000, v{vPA0}
v_xor_b32 v{vPA1}, 0x1000, v{vPA1}
""")
    ro = 1536 * (par + 1)
    a(f"""
ds_read_b128 {vr(AP,4)}, v{vPA0} offset:{2048*np_}
ds_read_b128 {vr(AP+4,4)}, v{vPA1} offset:{2048*np_}
ds_read_b128 {vr(AR,4)}, v{vRA0} offset:{ro}
ds_read_b128 {vr(AR+4,4)}, v{vRA1} offset:{ro}
ds_read2_b32 v[{vG0}:{vG1}], v{vIX} offset0:{32*(5+par)} offset1:{32*(5+par)+16}
s_setprio 1
""")
    for r in range(16):
        if r == 0: mfma(a, AGG, M, OH, AGG)
        if r == 3: mfma(a, AGG, M+4, OH+4, AGG)
        a(f"v_exp_f32 v{E+r}, v{Tc+r}")
    a("s_setprio 0")
    for r in range(8):
        a(f"v_pk_add_f32 {vr(E+2*r,2)}, {vr(E+2*r,2)}, 1.0 op_sel_hi:[1,0]")
    a(f"""
s_waitcnt lgkmcnt(0)
v_add_u32 v{vG0}, v{vG0}, v{vGC0}
v_add_u32 v{vG1}, v{vG1}, v{vGC1}
s_mov_b32 m0, s52
s_add_u32 s52, s52, 0x800
buffer_load_dwordx4 v{vG0}, s[32:35], 0 offen lds
buffer_load_dwordx4 v{vG1}, s[32:35], 0 offen offset:1024 lds
s_and_b32 s52, s52, 0x1fff
s_or_b32 s52, s52, s53
""")
    to = 1536 * par
    for m in range(2):
        a(f"ds_read_b64_tr_b16 {vr(OH+4*m,2)}, v{vTR} offset:{to + 48*16*m}")
        a(f"ds_read_b64_tr_b16 {vr(OH+4*m+2,2)}, v{vTR} offset:{to + 48*16*m + 48*8}")
    if par == 0:
        a(f"""
s_cmp_lg_u32 s50, 0
s_cbranch_scc1 {name}_NW
s_add_u32 s4, s49, 6
s_cmp_lt_u32 s4, s48
s_cbranch_scc1 {name}_NW
s_mov_b32 s50, 1
""")
        for s in range(16):
            so = "s54" if s < 4 else ("s55" if s < 8 else ("s64" if s < 12 else "s65"))
            a(f"buffer_load_dwordx4 {vr(WU+4*s,4)}, v{vWF}, s[32:35], {so} offen offset:{1024*(s&3)}")
        a(f"{name}_NW:")
    a("s_setprio 1")
    for r in range(16):
        if r == 0: mfma(a, Tn, AP, ID)
        if r == 3: mfma(a, Tn, AP+4, ID+4, Tn)
        if r == 6: mfma(a, Tn, AR, B2, Tn)
        if r == 9: mfma(a, Tn, AR+4, B2+4, Tn)
        a(f"v_rcp_f32 v{E+r}, v{E+r}")
    a("s_setprio 0")
    if par == 1:
        a(f"""
v_add_u32 v{vRA0}, 0xc00, v{vRA0}
v_add_u32 v{vRA1}, 0xc00, v{vRA1}
v_add_u32 v{vTR}, 0xc00, v{vTR}
v_add_u32 v{vIX}, 0x100, v{vIX}
""")
    for r in range(8):
        a(f"v_pk_mul_f32 {vr(E+2*r,2)}, {vr(E+2*r,2)}, {vr(Tc+2*r,2)}")
    for r in range(8):
        a(f"v_cvt_pk_bf16_f32 v{M+r}, v{E+2*r}, v{E+2*r+1}")
    a("s_add_u32 s49, s49, 1\ns_cmp_lt_u32 s49, s48")

def k2(a):
    a(f"""
s_cmpk_ge_u32 s2, 512
s_cbranch_scc1 K2_END
s_load_dwordx2 s[24:25], s[0:1], 64
s_load_dwordx2 s[8:9], s[0:1], 0
s_load_dwordx2 s[16:17], s[0:1], 32
s_load_dwordx2 s[20:21], s[0:1], 48
s_and_b32 s44, s2, 7
s_lshl_b32 s44, s44, 6
s_lshr_b32 s3, s2, 3
s_add_u32 s44, s44, s3
s_mul_i32 s45, s44, 1280169
s_add_u32 s46, s45, {1280169+65535}
s_add_u32 s45, s45, 65535
s_lshr_b32 s45, s45, 16
s_lshr_b32 s46, s46, 16
s_min_u32 s46, s46, 10000
s_sub_u32 s46, s46, s45
v_lshrrev_b32 v{vH}, 6, v0
v_and_b32 v1, 63, v0
v_lshrrev_b32 v241, 2, v0
v_readfirstlane_b32 s47, v{vH}
v_lshlrev_b32 v242, 11, v241
s_lshl_b32 s3, s44, 2
s_add_u32 s3, s3, {TAB}
s_movk_i32 s4, {CHE*12}
v_mul_u32_u24 v{vRB}, s4, v241
v_lshrrev_b32 v243, 4, v1
v_and_b32 v244, 15, v1
s_lshl_b32 s4, s47, 3
v_add_u32 v245, s4, v243
v_and_b32 v246, 15, v245
v_xor_b32 v246, v244, v246
v_lshlrev_b32 v246, 4, v246
v_lshl_or_b32 v246, v245, 8, v246
s_lshl_b32 s5, s45, 8
v_add_u32 v246, s5, v246
v_xor_b32 v247, 64, v246
s_lshl_b32 s7, s47, 11
s_add_u32 s7, s7, {XT}
s_mov_b32 m0, s7
v_lshlrev_b32 v{vWF}, 4, v1
s_lshl_b32 s53, s47, 13
s_add_u32 s6, s53, {WF}
s_add_u32 s7, s6, 0x1000
s_add_u32 s54, s6, 0x8000
s_add_u32 s55, s6, 0x9000
s_add_u32 s64, s6, 0x10000
s_add_u32 s65, s6, 0x11000
; W3 offsets
v_and_b32 v248, 31, v1
s_lshl_b32 s4, s47, 6
s_add_u32 s4, s4, 65536
v_lshl_add_u32 v249, v248, 1, s4
v_mov_b32 v{T0}, 0
v_mov_b32 v{T0+1}, 0
v_mov_b32 v{T0+2}, 0
v_mov_b32 v{T0+3}, 0
v_lshlrev_b32 v250, 4, v0
s_waitcnt lgkmcnt(0)
""")
    srd(a, 32, 24, WS_SIZE)
    a(f"buffer_load_dword v{vEND}, v242, s[32:35], s3 offen")
    srd(a, 28, 8, 2560000)
    srd(a, 40, 16, 66560)
    a(f"""
buffer_load_dwordx4 v246, s[28:31], 0 offen lds
buffer_load_dwordx4 v247, s[28:31], 0 offen offset:1024 lds
""")
    for k in range(4):
        a(f"buffer_load_ushort v{E+k}, v249, s[40:43], 0 offen offset:{256*k}")
    for s in range(8):
        a(f"buffer_load_dwordx4 {vr(WU+4*s,4)}, v{vWF}, s[32:35], {'s6' if s < 4 else 's7'} offen offset:{1024*(s&3)}")
    srd(a, 36, 20, 2560000)
    for j in range(7):
        a(f"ds_write_b128 v250, {vr(T0,4)} offset:{RB + 4096*j}")
    a(f"""
v_mov_b32 v251, {CNT}
ds_write_b64 v251, {vr(T0,2)}
v_lshrrev_b32 v{vH}, 5, v1
v_bfe_u32 v252, v1, 2, 2
v_xor_b32 v{vPA0}, v252, v{vH}
v_lshlrev_b32 v{vPA0}, 4, v{vPA0}
v_lshl_or_b32 v{vPA0}, v248, 6, v{vPA0}
v_add_u32 v{vPA0}, s53, v{vPA0}
v_xor_b32 v{vPA1}, 32, v{vPA0}
v_and_b32 v253, 3, v1
v_and_b32 v254, 3, v243
v_xor_b32 v{vGC0}, v253, v254
s_lshl_b32 s4, s47, 6
s_add_u32 s4, s4, {PW}
v_lshl_add_u32 v{vGC0}, v{vGC0}, 4, s4
v_add_u32 v{vGC1}, 0xfffffc00, v{vGC0}
v_lshrrev_b32 v254, 1, v248
v_lshlrev_b32 v255, 2, v{vH}
v_sub_u32 v254, v254, v255
v_and_b32 v255, 1, v1
v_lshlrev_b32 v255, 4, v255
v_mov_b32 v{T0+4}, 0x3f80
v_lshlrev_b32 v255, v255, v{T0+4}
""")
    for j in range(2):
        for u in range(4):
            a(f"v_cmp_eq_u32 vcc, {8*j+u}, v254\nv_cndmask_b32 v{ID+4*j+u}, 0, v255, vcc")
    for r in range(16):
        a(f"v_mov_b32 v{AGG+r}, 0")
    a(f"""
s_mov_b32 s66, 1
v_bfrev_b32 v254, 2
s_waitcnt vmcnt(14)
v_and_b32 v{vCUR}, 0xffff, v{vEND}
v_lshrrev_b32 v{vEND}, 16, v{vEND}
v_add_u32 v{vCUR}, v{vCUR}, v253
s_waitcnt lgkmcnt(0)
s_barrier
K2_ROUND:
v_mad_u32_u24 v241, v{vCUR}, 12, v{vRB}
s_mov_b32 s3, {REC}
""")
    for i in range(4):
        if i == 0:
            a(f"v_cmp_lt_u32 s[56:57], v{vCUR}, v{vEND}")
        else:
            a(f"v_add_u32 v242, {4*i}, v{vCUR}\nv_cmp_lt_u32 s[{56+2*i}:{57+2*i}], v242, v{vEND}")
    for i in range(4):
        a(f"""
v_cndmask_b32 v242, v254, v241, s[{56+2*i}:{57+2*i}]
buffer_load_dwordx3 {vr(RC+4*i,3)}, v242, s[32:35], s3 offen offset:{48*i}
""")
    a(f"""
s_mov_b64 exec, 1
s_bcnt1_i32_b64 s68, s[56:57]
s_bcnt1_i32_b64 s69, s[58:59]
s_bcnt1_i32_b64 s70, s[60:61]
s_bcnt1_i32_b64 s71, s[62:63]
s_add_u32 s69, s69, s68
s_add_u32 s70, s70, s69
s_add_u32 s71, s71, s70
v_mov_b32 v242, s71
ds_add_rtn_u32 v242, v251, v242
s_mov_b64 exec, -1
""")
    for i in range(4):
        a(f"v_mbcnt_lo_u32_b32 v{RC+4*i+3}, s{56+2*i}, 0\nv_mbcnt_hi_u32_b32 v{RC+4*i+3}, s{57+2*i}, v{RC+4*i+3}")
    a(f"""
s_cmp_eq_u32 s66, 0
s_cbranch_scc1 K2_NOQ
s_waitcnt vmcnt(12)
s_barrier
v_xor_b32 v243, v{vH}, v244
v_lshlrev_b32 v243, 4, v243
v_lshl_or_b32 v243, v248, 8, v243
""")
    for s in range(8):
        a(f"v_xor_b32 v245, {32*s}, v243\nds_read_b128 {vr(XF+4*s,4)}, v245 offset:{XT}")
    a(f"s_mov_b32 s6, 0x{NLOG2E:08x}")
    for k in range(4):
        a(f"v_lshlrev_b32 v{E+k}, 16, v{E+k}\nv_mul_f32 v{E+k}, s6, v{E+k}")
    a(f"""
v_cvt_pk_bf16_f32 v{E+4}, v{E}, v{E+1}
v_cvt_pk_bf16_f32 v{E+5}, v{E+2}, v{E+3}
v_lshlrev_b32 v{E+6}, 16, v{E+4}
v_and_b32 v{E+7}, 0xffff0000, v{E+4}
v_lshlrev_b32 v{E+8}, 16, v{E+5}
v_and_b32 v{E+9}, 0xffff0000, v{E+5}
v_sub_f32 v{E}, v{E}, v{E+6}
v_sub_f32 v{E+1}, v{E+1}, v{E+7}
v_sub_f32 v{E+2}, v{E+2}, v{E+8}
v_sub_f32 v{E+3}, v{E+3}, v{E+9}
v_cvt_pk_bf16_f32 v{E+6}, v{E}, v{E+1}
v_cvt_pk_bf16_f32 v{E+7}, v{E+2}, v{E+3}
v_cmp_eq_u32 vcc, 0, v{vH}
v_cndmask_b32 v{B2+6}, v{E+6}, v{E+4}, vcc
v_cndmask_b32 v{B2+7}, v{E+7}, v{E+5}, vcc
""")
    for s in range(8):
        a(f"s_waitcnt vmcnt({11-s}) lgkmcnt({7-s})")
        mfma(a, T1, XF+4*s, WU+4*s, None if s == 0 else T1)
    a("s_nop 7\ns_nop 7")
    for r in range(12):
        a(f"v_mul_f32 v{T1+r}, s6, v{T1+r}")
    for r in range(6):
        a(f"v_cvt_pk_bf16_f32 v{B2+r}, v{T1+2*r}, v{T1+2*r+1}")
    a(f"""
v_cndmask_b32 v{B2+4}, 0, v{B2+4}, vcc
v_cndmask_b32 v{B2+5}, 0, v{B2+5}, vcc
s_mov_b32 s66, 0
K2_NOQ:
s_waitcnt lgkmcnt(0)
v_readfirstlane_b32 s67, v242
v_mov_b32 v243, 0x3f80
s_movk_i32 s4, {CAP}
s_add_u32 s68, s68, s67
s_add_u32 s69, s69, s67
s_add_u32 s70, s70, s67
""")
    for i in range(4):
        p = RC + 4*i + 3
        a(f"""
v_add_u32 v{p}, s{67+i}, v{p}
v_cmp_gt_u32 vcc, s4, v{p}
s_and_b64 exec, vcc, s[{56+2*i}:{57+2*i}]
v_add_u32 v{vCUR}, 4, v{vCUR}
v_mul_u32_u24 v245, 48, v{p}
v_lshlrev_b32 v{p}, 2, v{p}
s_waitcnt vmcnt({3-i})
v_and_b32 v246, 0xff, v{RC+4*i+2}
v_add_u32 v246, v246, v245
v_and_b32 v{RC+4*i+2}, 0xffffff00, v{RC+4*i+2}
ds_write_b32 v{p}, v{RC+4*i+2} offset:{IDX}
ds_write_b64 v245, {vr(RC+4*i,2)} offset:{RB+40}
ds_write_b16 v246, v243 offset:{RB}
s_mov_b64 exec, -1
""")
    a(f"""
v_cmp_lt_u32 vcc, v{vCUR}, v{vEND}
s_mov_b64 exec, vcc
ds_write_b32 v251, v243 offset:4
s_mov_b64 exec, -1
v_mul_u32_u24 v{vRA1}, 48, v248
v_lshl_add_u32 v{vRA0}, v{vH}, 4, v{vRA1}
v_add_u32 v{vRA0}, {RB}, v{vRA0}
v_add_u32 v{vRA1}, {RB+32}, v{vRA1}
v_lshl_add_u32 v{vTR}, v{vH}, 2, v252
v_mul_u32_u24 v{vTR}, 48, v{vTR}
v_and_b32 v245, 1, v1
v_bfe_u32 v246, v1, 1, 1
v_lshl_or_b32 v245, v245, 1, v246
v_add_u32 v246, 4, v253
v_and_b32 v247, 16, v1
v_cmp_eq_u32 vcc, 0, v247
v_cndmask_b32 v245, v246, v245, vcc
v_lshl_add_u32 v{vTR}, v245, 3, v{vTR}
v_add_u32 v{vTR}, {RB}, v{vTR}
v_lshrrev_b32 v{vIX}, 2, v1
v_lshlrev_b32 v{vIX}, 2, v{vIX}
v_add_u32 v{vIX}, {IDX}, v{vIX}
v_and_b32 v{vPA0}, 0xffffefff, v{vPA0}
v_and_b32 v{vPA1}, 0xffffefff, v{vPA1}
s_waitcnt lgkmcnt(0)
s_barrier
ds_read_b64 v[246:247], v251
""")
    for t in range(5):
        a(f"ds_read2_b32 {vr(RC+2*t,2)}, v{vIX} offset0:{32*t} offset1:{32*t+16}")
    for r in range(8):
        a(f"v_mov_b32 v{M+r}, 0\nv_mov_b32 v{OH+r}, 0")
    a("s_mov_b32 s52, s53")
    for t in range(4):
        a(f"""
s_waitcnt lgkmcnt({4-t})
s_mov_b32 m0, s52
v_add_u32 v{RC+2*t}, v{RC+2*t}, v{vGC0}
v_add_u32 v{RC+2*t+1}, v{RC+2*t+1}, v{vGC1}
s_add_u32 s52, s52, 0x800
buffer_load_dwordx4 v{RC+2*t}, s[32:35], 0 offen lds
buffer_load_dwordx4 v{RC+2*t+1}, s[32:35], 0 offen offset:1024 lds
""")
    a(f"""
v_readfirstlane_b32 s48, v246
v_readfirstlane_b32 s51, v247
ds_read_b128 {vr(AR,4)}, v{vRA0}
ds_read_b128 {vr(AR+4,4)}, v{vRA1}
s_min_u32 s48, s48, {CAP}
s_add_u32 s48, s48, 31
s_lshr_b32 s48, s48, 5
s_max_u32 s48, s48, 1
s_mov_b32 s49, 0
s_mov_b32 s50, 0
s_mov_b32 m0, s53
s_add_u32 s52, s53, 0x800
s_waitcnt vmcnt(6)
ds_read_b128 {vr(AP,4)}, v{vPA0}
ds_read_b128 {vr(AP+4,4)}, v{vPA1}
s_waitcnt lgkmcnt(2)
v_add_u32 v{RC+8}, v{RC+8}, v{vGC0}
v_add_u32 v{RC+9}, v{RC+9}, v{vGC1}
""")
    mfma(a, T0, AR, B2)
    mfma(a, T0, AR+4, B2+4, T0)
    a(f"""
s_waitcnt lgkmcnt(0)
buffer_load_dwordx4 v{RC+8}, s[32:35], 0 offen lds
buffer_load_dwordx4 v{RC+9}, s[32:35], 0 offen offset:1024 lds
""")
    mfma(a, T0, AP, ID, T0)
    mfma(a, T0, AP+4, ID+4, T0)
    a("s_nop 7\nK2_LOOP:")
    k2_half(a, 0, T0, T1, "K2A")
    a("s_cbranch_scc0 K2_DONE")
    k2_half(a, 1, T1, T0, "K2B")
    a("s_cbranch_scc1 K2_LOOP\nK2_DONE:\ns_waitcnt lgkmcnt(0)")
    mfma(a, AGG, M, OH, AGG)
    mfma(a, AGG, M+4, OH+4, AGG)
    a(f"""
s_waitcnt vmcnt(0)
s_cmp_eq_u32 s51, 0
s_cbranch_scc1 K2_EPI
s_barrier
v_mov_b32 v{E}, 0
v_mov_b32 v{E+1}, 0
v_mov_b32 v{E+2}, 0
v_mov_b32 v{E+3}, 0
""")
    for j in range(7):
        a(f"ds_write_b128 v250, {vr(E,4)} offset:{RB + 4096*j}")
    a(f"""
ds_write_b64 v251, {vr(E,2)}
s_waitcnt lgkmcnt(0)
s_barrier
s_branch K2_ROUND
K2_EPI:
""")
    for s in range(8):
        mfma(a, T0, WU+4*s, XF+4*s, None if s == 0 else T0)
    a(f"s_mov_b32 s6, 0x{NLN2:08x}\ns_nop 4")
    for r in range(16):
        a(f"v_mul_f32 v{AGG+r}, s6, v{AGG+r}")
    for r in range(8):
        a(f"v_cvt_pk_bf16_f32 v{M+r}, v{AGG+2*r}, v{AGG+2*r+1}")
    a(f"""
v_add_u32 v245, s53, v{vWF}
ds_write_b128 v245, {vr(M,4)}
ds_write_b128 v245, {vr(M+4,4)} offset:1024
s_waitcnt lgkmcnt(0)
s_barrier
""")
    for s in range(8):
        a(f"ds_read_b128 {vr(T1+4*s,4)}, v{vWF} offset:{8192*(s>>1) + 1024*(s&1)}")
    a(f"""
v_lshlrev_b32 v245, 1, v{vH}
v_xor_b32 v245, v245, v252
v_lshlrev_b32 v245, 4, v245
v_lshl_or_b32 v245, v248, 6, v245
v_add_u32 v245, s53, v245
v_xor_b32 v246, 16, v245
v_lshrrev_b32 v241, 2, v1
v_bfe_u32 v242, v1, 4, 2
v_xor_b32 v242, v242, v253
v_lshlrev_b32 v242, 4, v242
v_lshl_or_b32 v242, v241, 6, v242
v_add_u32 v242, s53, v242
v_lshlrev_b32 v243, 4, v253
v_lshl_or_b32 v243, v241, 8, v243
s_lshl_b32 s4, s47, 6
s_add_u32 s4, s4, s5
v_add_u32 v243, s4, v243
v_add_u32 v244, 0x1000, v243
v_add_u32 v247, 16, v241
v_cmp_gt_u32 s[56:57], s46, v241
v_cmp_gt_u32 s[58:59], s46, v247
s_mov_b32 s6, 0x{NLOG2E:08x}
""")
    for s in range(8):
        a(f"s_waitcnt lgkmcnt({7-s})")
        mfma(a, T0, WU+32+4*s, T1+4*s, T0)
    a("s_nop 7\ns_nop 7")
    for r in range(16):
        a(f"v_mul_f32 v{E+r}, s6, v{T0+r}")
    for r in range(16):
        a(f"v_exp_f32 v{E+r}, v{E+r}")
    for r in range(8):
        a(f"v_pk_add_f32 {vr(E+2*r,2)}, {vr(E+2*r,2)}, 1.0 op_sel_hi:[1,0]")
    for r in range(16):
        a(f"v_rcp_f32 v{E+r}, v{E+r}")
    for r in range(8):
        a(f"v_pk_mul_f32 {vr(E+2*r,2)}, {vr(E+2*r,2)}, {vr(T0+2*r,2)}")
    for r in range(8):
        a(f"v_cvt_pk_bf16_f32 v{M+r}, v{E+2*r}, v{E+2*r+1}")
    a(f"""
ds_write_b128 v245, {vr(M,4)} offset:2048
ds_write_b128 v246, {vr(M+4,4)} offset:2048
s_waitcnt lgkmcnt(0)
ds_read_b128 {vr(AP,4)}, v242 offset:2048
ds_read_b128 {vr(AP+4,4)}, v242 offset:3072
s_mov_b64 exec, s[56:57]
s_waitcnt lgkmcnt(1)
buffer_store_dwordx4 {vr(AP,4)}, v243, s[36:39], 0 offen
s_mov_b64 exec, s[58:59]
s_waitcnt lgkmcnt(0)
buffer_store_dwordx4 {vr(AP+4,4)}, v244, s[36:39], 0 offen
K2_END:
s_endpgm
""")

def desc(name, vg):
    return f""".amdhsa_kernel {name}
  .amdhsa_next_free_vgpr {vg}
  .amdhsa_next_free_sgpr 96
  .amdhsa_accum_offset {vg}
  .amdhsa_group_segment_fixed_size 0
  .amdhsa_kernarg_size 72
  .amdhsa_user_sgpr_count 2
  .amdhsa_user_sgpr_kernarg_segment_ptr 1
  .amdhsa_system_sgpr_workgroup_id_x 1
.end_amdhsa_kernel
"""

def main(out):
    ref = open(f"cdna_kernels/{NAME}.s.ref").read().split("\n")
    hdr = [l for l in ref if l.startswith(";") and "@launch" not in l and "Override" not in l and "grid=ceil" not in l]
    k1n, k2n = "mpnn_prep_kernel", f"{NAME}_kernel"
    t = "\n".join(hdr) + "\n"
    t += f"; @launch kernel={k1n} grid=({K1_GRID},1,1) block=(640,1,1) lds=65536\n"
    t += f"; @launch kernel={k2n} grid=(512,1,1) block=(256,1,1) lds={K2_LDS}\n"
    t += '.amdgcn_target "amdgcn-amd-amdhsa--gfx950"\n.text\n'
    for n, f in ((k1n, k1), (k2n, k2)):
        a = A(); f(a)
        t += f".globl {n}\n.p2align 8\n.type {n},@function\n{n}:\n" + a.text()
    t += '.section .rodata,"a"\n.p2align 6\n' + desc(k1n, 96) + ".p2align 6\n" + desc(k2n, 256)
    open(out, "w").write(t)

if __name__ == "__main__":
    main(sys.argv[1] if len(sys.argv) > 1 else f"cdna_kernels/{NAME}.s")
```

```python
import sys, struct, os
sys.path.insert(0, os.path.dirname(os.path.abspath(__file__)))
import haz
VERB = bool(os.environ.get('VERB'))

NAME = "gather_scatter__mpnn_edge_mlp__graph"
def f2u(x): return struct.unpack("<I", struct.pack("<f", x))[0]
NLOG2E = f2u(-1.4426950408889634)
NLN2 = f2u(-0.6931471805599453)

PW = 4096
REC = 0x280000
TAB = 0x460000
WF = 0x480000
WS_SIZE = 0x4A0000
NCH = 64
CHE = 2500
NG = 157
K1_GRID = NCH + NG + 3

class A:
    def __init__(s): s.l = []
    def __call__(s, t):
        for x in t.strip("\n").split("\n"):
            if x.strip().startswith("@"):
                x = x.strip()
                if x[1] in "SR": stamp(s, int(x[2:]), x[1] == "R")
                elif x[1] in "AB":
                    if PROFM == x[1]: stamp(s, int(x[2:]))
                else: prof_out(s, int(x[2:]), 32)
                continue
            s.l.append("    " + x.strip() if not x.strip().endswith(":") else x.strip())
    def text(s): return "\n".join(haz.pad(s.l, VERB)) + "\n"

def srd(a, d, b, n):
    a(f"s_mov_b32 s{d}, s{b}\ns_mov_b32 s{d+1}, s{b+1}\ns_mov_b32 s{d+2}, {n}\ns_mov_b32 s{d+3}, 0x00020000")

PROF = bool(os.environ.get('PROF'))
PROFB = 0x800000
PROFM = os.environ.get('PROF', '')
def stamp(a, i, real=False):
    if PROF:
        a(f"s_{'memrealtime' if real else 'memtime'} s[{72+2*i}:{73+2*i}]")
def prof_out(a, kid, wsr):
    if not PROF: return
    stamp(a, 10); stamp(a, 11, True)
    a(f"""
s_mov_b64 exec, 1
s_waitcnt lgkmcnt(0)
v_lshrrev_b32 v1, 6, v0
v_lshlrev_b32 v1, 6, v1
s_lshl_b32 s3, s2, 10
s_add_u32 s3, s3, {PROFB + kid*0x100000}
s_mov_b32 s{wsr+2}, 0x1000000
""")
    for j in range(3):
        for u in range(4):
            a(f"v_mov_b32 v{4+u}, s{72+2*(4*j+u)}")
        a(f"buffer_store_dwordx4 v[4:7], v1, s[{wsr}:{wsr+3}], s3 offen offset:{16*j}\ns_nop 1")
    a("s_getreg_b32 s4, hwreg(HW_REG_HW_ID)\ns_getreg_b32 s5, hwreg(HW_REG_XCC_ID)\nv_mov_b32 v4, s4\nv_mov_b32 v5, s5\nv_mov_b32 v6, s48\nv_mov_b32 v7, 1")
    a(f"buffer_store_dwordx4 v[4:7], v1, s[{wsr}:{wsr+3}], s3 offen offset:48")

def vr(b, n): return f"v[{b}:{b+n-1}]"

def k1(a):
    a(f"""
s_cmp_ge_u32 s2, {K1_GRID}
s_cbranch_scc1 K1_END
@R0
@S1
s_load_dwordx16 s[8:23], s[0:1], 0
s_load_dwordx2 s[24:25], s[0:1], 64
s_cmp_lt_u32 s2, {NCH}
s_cbranch_scc1 K1_SORT
""")
    a(f"""
v_lshrrev_b32 v2, 6, v0
v_and_b32 v1, 63, v0
s_nop 0
v_readfirstlane_b32 s27, v2
s_cmp_ge_u32 s27, 8
s_cbranch_scc1 K1_END
s_and_b32 s26, s27, 3
s_sub_u32 s3, s2, {NCH}
s_mov_b32 s44, 4
s_mov_b32 s45, 2
s_mov_b32 s46, 3
s_mov_b32 s47, 3
s_movk_i32 s48, 1024
s_mov_b32 s49, 0
s_cmp_eq_u32 s3, {NG}
s_cselect_b32 s44, 2, s44
s_cselect_b32 s45, 3, s45
s_cselect_b32 s46, 4, s46
s_cselect_b32 s49, 0x8000, s49
s_cmp_eq_u32 s3, {NG+2}
s_cselect_b32 s47, 2, s47
s_cselect_b32 s48, 0x800, s48
s_cselect_b32 s49, 0x8000, s49
v_lshrrev_b32 v2, 4, v1
v_and_b32 v3, 15, v1
v_lshlrev_b32 v4, 2, v2
v_xor_b32 v4, v3, v4
v_lshlrev_b32 v4, 4, v4
v_lshl_or_b32 v4, v2, 8, v4
s_lshl_b32 s4, s27, 3
v_add_u32 v5, s4, v2
v_and_b32 v6, 15, v5
v_xor_b32 v6, v3, v6
v_lshlrev_b32 v6, 4, v6
v_lshl_or_b32 v6, v5, 8, v6
s_lshl_b32 s5, s3, 14
v_add_u32 v6, s5, v6
v_xor_b32 v7, 64, v6
s_lshl_b32 s6, s27, 12
s_add_u32 s49, s49, s6
s_waitcnt lgkmcnt(0)
@S2
""")
    srd(a, 28, 8, 2560000)
    srd(a, 32, 24, WS_SIZE)
    a(f"""
s_cmp_gt_u32 s3, {NG}
s_cselect_b32 s36, s18, s16
s_cselect_b32 s37, s19, s17
s_mov_b32 s38, 65536
s_mov_b32 s39, 0x00020000
s_mov_b32 m0, s6
s_lshl_b32 s7, s27, 11
s_add_u32 s7, s7, 32768
buffer_load_dwordx4 v4, s[36:39], s49 offen lds
buffer_load_dwordx4 v4, s[36:39], s49 offen offset:1024 lds
buffer_load_dwordx4 v4, s[36:39], s49 offen offset:2048 lds
buffer_load_dwordx4 v4, s[36:39], s49 offen offset:3072 lds
s_mov_b32 m0, s7
s_nop 0
buffer_load_dwordx4 v6, s[28:31], 0 offen lds
buffer_load_dwordx4 v7, s[28:31], 0 offen offset:1024 lds
v_and_b32 v8, 1, v1
v_lshlrev_b32 v8, s44, v8
v_bfe_u32 v9, v1, 1, 1
v_lshlrev_b32 v9, s45, v9
v_or_b32 v8, v8, v9
v_bfe_u32 v9, v1, 4, 1
v_lshlrev_b32 v9, s46, v9
v_or_b32 v8, v8, v9
v_bfe_u32 v10, v1, 2, 2
v_lshrrev_b32 v11, 5, v1
v_lshlrev_b32 v12, s47, v11
v_add_u32 v12, v12, v10
v_lshrrev_b32 v9, 3, v8
s_lshl_b32 s4, s26, 2
v_add_u32 v9, s4, v9
v_lshlrev_b32 v10, 2, v10
v_xor_b32 v9, v9, v10
v_lshlrev_b32 v9, 4, v9
v_lshl_or_b32 v9, v12, 8, v9
v_and_b32 v8, 4, v8
v_lshl_or_b32 v8, v8, 1, v9
v_add_u32 v9, s48, v8
v_and_b32 v12, 31, v1
v_xor_b32 v13, v11, v3
v_lshlrev_b32 v13, 4, v13
v_lshl_or_b32 v13, v12, 8, v13
s_lshr_b32 s4, s27, 2
s_lshl_b32 s4, s4, 13
s_add_u32 s4, s4, 32768
v_add_u32 v13, s4, v13
s_waitcnt vmcnt(0)
@S3
s_barrier
@S4
""")
    for s in range(8):
        a(f"ds_read_b64_tr_b16 v[{32+4*s}:{33+4*s}], v8 offset:{4096*s}")
        a(f"ds_read_b64_tr_b16 v[{34+4*s}:{35+4*s}], v9 offset:{4096*s}")
    a(f"""
s_cmp_ge_u32 s3, {NG}
s_cbranch_scc1 K1_PREP
""")
    for s in range(8):
        if s == 0:
            a(f"ds_read_b128 v[64:67], v13")
        else:
            a(f"v_xor_b32 v14, {32*s}, v13\nds_read_b128 v[{64+4*s}:{67+4*s}], v14")
    a(f"""
s_lshl_b32 s4, s27, 11
s_add_u32 s4, s4, 49152
v_bfe_u32 v14, v1, 2, 2
v_lshlrev_b32 v15, 1, v11
v_xor_b32 v14, v14, v15
v_lshlrev_b32 v14, 4, v14
v_lshl_or_b32 v14, v12, 6, v14
v_add_u32 v14, s4, v14
v_xor_b32 v15, 16, v14
v_and_b32 v2, 3, v2
v_and_b32 v3, 3, v1
v_xor_b32 v2, v2, v3
v_lshlrev_b32 v2, 4, v2
v_lshrrev_b32 v4, 2, v1
v_lshl_or_b32 v2, v4, 6, v2
v_add_u32 v2, s4, v2
v_lshlrev_b32 v3, 4, v3
v_lshl_or_b32 v3, v4, 8, v3
s_lshr_b32 s4, s27, 2
s_lshl_b32 s4, s4, 13
s_add_u32 s4, s4, s5
s_lshl_b32 s6, s26, 6
s_add_u32 s4, s4, s6
s_add_u32 s4, s4, {PW}
v_add_u32 v3, s4, v3
v_add_u32 v4, 0x1000, v3
s_mov_b32 s6, 0x{NLOG2E:08x}
""")
    for s in range(8):
        a(f"s_waitcnt lgkmcnt({7-s})")
        c = "0" if s == 0 else "v[16:31]"
        a(f"v_mfma_f32_32x32x16_bf16 v[16:31], {vr(32+4*s,4)}, {vr(64+4*s,4)}, {c}")
    a("s_nop 7\ns_nop 7")
    for r in range(16):
        a(f"v_mul_f32 v{16+r}, s6, v{16+r}")
    for r in range(8):
        a(f"v_cvt_pk_bf16_f32 v{32+r}, v{16+2*r}, v{17+2*r}")
    a(f"""
@S5
ds_write_b128 v14, v[32:35]
ds_write_b128 v15, v[36:39]
s_waitcnt lgkmcnt(0)
ds_read_b128 v[40:43], v2
ds_read_b128 v[44:47], v2 offset:1024
s_waitcnt lgkmcnt(1)
buffer_store_dwordx4 v[40:43], v3, s[32:35], 0 offen
s_waitcnt lgkmcnt(0)
buffer_store_dwordx4 v[44:47], v4, s[32:35], 0 offen
@P0
s_endpgm
K1_PREP:
s_cmp_ge_u32 s27, 4
s_cbranch_scc1 K1_END
s_sub_u32 s4, s3, {NG}
s_lshl_b32 s4, s4, 15
s_lshl_b32 s6, s26, 13
s_add_u32 s4, s4, s6
s_add_u32 s4, s4, {WF}
v_lshlrev_b32 v2, 4, v1
v_add_u32 v2, s4, v2
v_add_u32 v3, 0x1000, v2
s_waitcnt lgkmcnt(0)
""")
    for s in range(8):
        a(f"buffer_store_dwordx4 {vr(32+4*s,4)}, v{2+(s>>2)}, s[32:35], 0 offen offset:{1024*(s&3)}")
    a("s_endpgm")
    a(f"""
K1_SORT:
s_mul_i32 s3, s2, {CHE*4}
v_lshlrev_b32 v1, 4, v0
v_add_u32 v1, s3, v1
v_lshlrev_b32 v2, 1, v1
v_lshlrev_b32 v3, 2, v0
v_mov_b32 v30, 0
v_mov_b32 v31, 1
ds_write_b32 v3, v30
s_movk_i32 s4, 625
v_cmp_gt_u32 vcc, s4, v0
s_mov_b64 s[26:27], vcc
s_movk_i32 s5, 3355
s_mov_b32 s6, 1280180
s_waitcnt lgkmcnt(0)
@S2
""")
    srd(a, 28, 14, 640000)
    srd(a, 36, 12, 640000)
    srd(a, 40, 10, 1280000)
    a(f"""
s_mov_b64 exec, s[26:27]
buffer_load_dwordx4 v[4:7], v1, s[28:31], 0 offen
buffer_load_dwordx4 v[8:11], v1, s[36:39], 0 offen
buffer_load_dwordx4 v[12:15], v2, s[40:43], 0 offen
buffer_load_dwordx4 v[24:27], v2, s[40:43], 0 offen offset:16
""")
    srd(a, 32, 24, WS_SIZE)
    a("s_barrier\ns_waitcnt vmcnt(3)\n@S3")
    for i in range(4):
        a(f"""
v_mul_u32_u24 v{4+i}, s5, v{4+i}
v_lshrrev_b32 v{32+i}, 16, v{4+i}
v_lshlrev_b32 v{32+i}, 2, v{32+i}
ds_add_rtn_u32 v{36+i}, v{32+i}, v31
""")
    for i in range(4):
        a(f"""
v_and_b32 v{4+i}, 0xffff, v{4+i}
v_mul_hi_u32_u24 v{4+i}, s6, v{4+i}
v_and_b32 v40, 0x13, v{4+i}
v_lshlrev_b32 v40, 1, v40
v_and_or_b32 v40, v{4+i}, 8, v40
v_and_b32 v{4+i}, 4, v{4+i}
v_lshl_or_b32 v{4+i}, v{4+i}, 2, v40
""")
    recs = [22, 16, 46, 28]
    a("s_waitcnt vmcnt(2)")
    for i in range(4):
        a(f"v_lshl_or_b32 v{recs[i]}, v{8+i}, 8, v{4+i}")
    a(f"""
s_mov_b64 exec, -1
v_and_b32 v3, 63, v0
v_lshlrev_b32 v3, 5, v3
s_waitcnt lgkmcnt(0)
s_barrier
@S4
ds_read_b128 v[48:51], v3
ds_read_b128 v[52:55], v3 offset:16
s_waitcnt lgkmcnt(0)
""")
    for j in range(1, 8):
        a(f"v_add_u32 v{48+j}, v{48+j}, v{47+j}")
    a(f"""
v_mov_b32 v56, v55
s_nop 1
v_add_u32_dpp v56, v56, v56 row_shr:1 row_mask:0xf bank_mask:0xf bound_ctrl:0
s_nop 1
v_add_u32_dpp v56, v56, v56 row_shr:2 row_mask:0xf bank_mask:0xf bound_ctrl:0
s_nop 1
v_add_u32_dpp v56, v56, v56 row_shr:4 row_mask:0xf bank_mask:0xf bound_ctrl:0
s_nop 1
v_add_u32_dpp v56, v56, v56 row_shr:8 row_mask:0xf bank_mask:0xf bound_ctrl:0
s_nop 1
v_add_u32_dpp v56, v56, v56 row_bcast:15 row_mask:0xa bank_mask:0xf
s_nop 1
v_add_u32_dpp v56, v56, v56 row_bcast:31 row_mask:0xc bank_mask:0xf
v_sub_u32 v56, v56, v55
""")
    for j in range(1, 8):
        a(f"v_add_u32 v{56+j}, v56, v{47+j}")
    a(f"""
v_add_u32 v64, v56, v55
ds_write_b128 v3, v[56:59] offset:4096
ds_write_b128 v3, v[60:63] offset:4112
""")
    for j in range(8):
        a(f"v_lshl_or_b32 v{48+j}, v{57+j}, 16, v{56+j}")
    a(f"""
s_waitcnt lgkmcnt(0)
s_mov_b64 exec, s[26:27]
ds_read_b32 v4, v32 offset:4096
ds_read_b32 v5, v33 offset:4096
ds_read_b32 v6, v34 offset:4096
ds_read_b32 v7, v35 offset:4096
s_mul_i32 s3, s2, {CHE*12}
s_add_u32 s3, s3, {REC}
s_waitcnt vmcnt(0)
@S5
v_mov_b32 v20, v12
v_mov_b32 v21, v13
v_mov_b32 v44, v24
v_mov_b32 v45, v25
""")
    trip = [20, 14, 44, 26]
    for i in range(4):
        a(f"""
s_waitcnt lgkmcnt({3-i})
v_add_u32 v{4+i}, v{4+i}, v{36+i}
v_mul_u32_u24 v{4+i}, 12, v{4+i}
buffer_store_dwordx3 {vr(trip[i],3)}, v{4+i}, s[32:35], s3 offen
""")
    a(f"""
v_cmp_gt_u32 vcc, 64, v0
s_and_b64 exec, exec, vcc
s_cbranch_execz K1_END
s_lshl_b32 s3, s2, 11
s_add_u32 s3, s3, {TAB}
buffer_store_dwordx4 v[48:51], v3, s[32:35], s3 offen
buffer_store_dwordx4 v[52:55], v3, s[32:35], s3 offen offset:16
@P0
K1_END:
s_endpgm
""")

RING = 0; RB = 32768; IDX = RB + 20480; NZ = 6; XT = RB + 24576; CNT = XT + 8192; K2_LDS = CNT + 16
CAP = 416
T0, T1, E, AGG, M, AP, AR, OH, ID, B2, XF, WU, RC = 16, 32, 48, 64, 80, 88, 96, 104, 112, 120, 128, 160, 224
vPA0, vPA1, vRA0, vRA1, vTR, vIX, vGC0, vGC1, vCUR, vEND, vWF, vH, vG0, vG1 = 2, 3, 4, 5, 6, 7, 8, 9, 10, 11, 12, 13, 14, 15
W3R = 244
vN, vRB, vZ, vCN, vQ2, vQ, vOOB, vXA = 248, 249, 250, 251, 252, 253, 254, 255
NR = 5
PF = int(os.environ.get("PF", "0"))

def mfma(a, d, x, y, c=None):
    cc = "0" if c is None else vr(c, 16)
    a(f"v_mfma_f32_32x32x16_bf16 {vr(d,16)}, {vr(x,4)}, {vr(y,4)}, {cc}")

def k2_half(a, par, Tc, Tn, name):
    np_ = par ^ 1
    a(f"""
s_cmp_lg_u32 s50, 0
s_cbranch_scc1 {name}_W2
s_waitcnt vmcnt(6) lgkmcnt(0)
s_branch {name}_W3
{name}_W2:
s_waitcnt vmcnt(22) lgkmcnt(0)
{name}_W3:
""")
    if par == 1:
        a(f"""
v_xor_b32 v{vPA0}, 0x1000, v{vPA0}
v_xor_b32 v{vPA1}, 0x1000, v{vPA1}
""")
    ro = 1536 * (par + 1)
    a(f"""
ds_read_b128 {vr(AP,4)}, v{vPA0} offset:{2048*np_}
ds_read_b128 {vr(AP+4,4)}, v{vPA1} offset:{2048*np_}
ds_read_b128 {vr(AR,4)}, v{vRA0} offset:{ro}
ds_read_b128 {vr(AR+4,4)}, v{vRA1} offset:{ro}
ds_read2_b32 v[{vG0}:{vG1}], v{vIX} offset0:{32*(5+par)} offset1:{32*(5+par)+16}
s_setprio 1
""")
    for r in range(16):
        if r == 0: mfma(a, AGG, M, OH, AGG)
        if r == 3: mfma(a, AGG, M+4, OH+4, AGG)
        a(f"v_exp_f32 v{E+r}, v{Tc+r}")
    a("s_setprio 0")
    for r in range(8):
        a(f"v_pk_add_f32 {vr(E+2*r,2)}, {vr(E+2*r,2)}, 1.0 op_sel_hi:[1,0]")
    a(f"""
s_waitcnt lgkmcnt(0)
v_add_u32 v{vG0}, v{vG0}, v{vGC0}
v_add_u32 v{vG1}, v{vG1}, v{vGC1}
s_mov_b32 m0, s52
s_add_u32 s52, s52, 0x800
buffer_load_dwordx4 v{vG0}, s[32:35], 0 offen lds
buffer_load_dwordx4 v{vG1}, s[32:35], 0 offen offset:1024 lds
s_and_b32 s52, s52, 0x1fff
s_or_b32 s52, s52, s53
""")
    to = 1536 * par
    for m in range(2):
        a(f"ds_read_b64_tr_b16 {vr(OH+4*m,2)}, v{vTR} offset:{to + 48*16*m}")
        a(f"ds_read_b64_tr_b16 {vr(OH+4*m+2,2)}, v{vTR} offset:{to + 48*16*m + 48*8}")
    if par == 0:
        a(f"""
s_cmp_lg_u32 s50, 0
s_cbranch_scc1 {name}_NW
s_add_u32 s4, s49, 6
s_cmp_lt_u32 s4, s48
s_cbranch_scc1 {name}_NW
s_mov_b32 s50, 1
""")
        for s in range(16):
            so = "s54" if s < 4 else ("s55" if s < 8 else ("s26" if s < 12 else "s27"))
            a(f"buffer_load_dwordx4 {vr(WU+4*s,4)}, v{vWF}, s[32:35], {so} offen offset:{1024*(s&3)}")
        a(f"{name}_NW:")
    a("s_setprio 1")
    for r in range(16):
        if r == 0: mfma(a, Tn, AP, ID)
        if r == 3: mfma(a, Tn, AP+4, ID+4, Tn)
        if r == 6: mfma(a, Tn, AR, B2, Tn)
        if r == 9: mfma(a, Tn, AR+4, B2+4, Tn)
        a(f"v_rcp_f32 v{E+r}, v{E+r}")
    a("s_setprio 0")
    if par == 1:
        a(f"""
v_add_u32 v{vRA0}, 0xc00, v{vRA0}
v_add_u32 v{vRA1}, 0xc00, v{vRA1}
v_add_u32 v{vTR}, 0xc00, v{vTR}
v_add_u32 v{vIX}, 0x100, v{vIX}
""")
    for r in range(8):
        a(f"v_pk_mul_f32 {vr(E+2*r,2)}, {vr(E+2*r,2)}, {vr(Tc+2*r,2)}")
    for r in range(8):
        a(f"v_cvt_pk_bf16_f32 v{M+r}, v{E+2*r}, v{E+2*r+1}")
    a("s_add_u32 s49, s49, 1\ns_cmp_lt_u32 s49, s48")

def k2_addr_init(a):
    t = AP
    a(f"""
v_mul_u32_u24 v{vRA1}, 48, v{vN}
v_lshl_add_u32 v{vRA0}, v{vH}, 4, v{vRA1}
v_add_u32 v{vRA0}, {RB}, v{vRA0}
v_add_u32 v{vRA1}, {RB+32}, v{vRA1}
v_and_b32 v{t+2}, 16, v1
v_cmp_eq_u32 vcc, 0, v{t+2}
v_lshl_add_u32 v{vTR}, v{vH}, 2, v{vQ2}
v_mul_u32_u24 v{vTR}, 48, v{vTR}
v_and_b32 v{t}, 1, v1
v_bfe_u32 v{t+1}, v1, 1, 1
v_lshl_or_b32 v{t}, v{t}, 1, v{t+1}
v_add_u32 v{t+1}, 4, v{vQ}
v_cndmask_b32 v{t}, v{t+1}, v{t}, vcc
v_lshl_add_u32 v{vTR}, v{t}, 3, v{vTR}
v_add_u32 v{vTR}, {RB}, v{vTR}
v_and_b32 v{vIX}, 60, v1
v_add_u32 v{vIX}, {IDX}, v{vIX}
v_xor_b32 v{vPA0}, v{vQ2}, v{vH}
v_lshlrev_b32 v{vPA0}, 4, v{vPA0}
v_lshl_or_b32 v{vPA0}, v{vN}, 6, v{vPA0}
v_add_u32 v{vPA0}, s53, v{vPA0}
v_xor_b32 v{vPA1}, 32, v{vPA0}
""")
    for r in range(8):
        a(f"v_mov_b32 v{M+r}, 0\nv_mov_b32 v{OH+r}, 0")

def k2_zero(a):
    for j in range(NZ):
        a(f"ds_write_b128 v{vZ}, {vr(M,4)} offset:{RB + 4096*j}")
    a(f"ds_write_b64 v{vCN}, {vr(M,2)}")

def k2(a):
    t = AR
    a(f"""
s_cmpk_ge_u32 s2, 512
s_cbranch_scc1 K2_END
@R0
@S1
s_load_dwordx2 s[24:25], s[0:1], 64
s_load_dwordx2 s[8:9], s[0:1], 0
s_load_dwordx2 s[16:17], s[0:1], 32
s_load_dwordx2 s[20:21], s[0:1], 48
v_lshrrev_b32 v{vH}, 6, v0
v_and_b32 v1, 63, v0
s_and_b32 s44, s2, 7
v_readfirstlane_b32 s47, v{vH}
s_lshl_b32 s44, s44, 6
s_lshr_b32 s43, s2, 3
s_add_u32 s44, s44, s43
v_lshrrev_b32 v{t}, 2, v0
v_lshlrev_b32 v{t+1}, 11, v{t}
s_lshl_b32 s3, s44, 2
s_add_u32 s3, s3, {TAB}
s_mov_b32 s34, {WS_SIZE}
s_mov_b32 s35, 0x00020000
s_mul_i32 s45, s44, 1280169
s_add_u32 s46, s45, {1280169+65535}
s_add_u32 s45, s45, 65535
s_lshr_b32 s45, s45, 16
s_lshr_b32 s46, s46, 16
s_min_u32 s46, s46, 10000
s_sub_u32 s46, s46, s45
s_movk_i32 s4, {CHE*12}
v_mul_u32_u24 v{vRB}, s4, v{t}
v_bfrev_b32 v{vOOB}, 2
v_lshrrev_b32 v{t+2}, 4, v1
v_and_b32 v{t+3}, 15, v1
s_lshl_b32 s4, s47, 3
v_add_u32 v{t+4}, s4, v{t+2}
v_and_b32 v{t+5}, 15, v{t+4}
v_xor_b32 v{t+5}, v{t+3}, v{t+5}
v_lshlrev_b32 v{t+5}, 4, v{t+5}
v_lshl_or_b32 v{t+5}, v{t+4}, 8, v{t+5}
s_lshl_b32 s5, s45, 8
v_add_u32 v{t+5}, s5, v{t+5}
v_xor_b32 v{t+6}, 64, v{t+5}
s_lshl_b32 s7, s47, 11
s_add_u32 s7, s7, {XT}
s_mov_b32 m0, s7
v_and_b32 v{vN}, 31, v1
s_lshl_b32 s4, s47, 6
s_add_u32 s4, s4, 65536
v_lshl_add_u32 v{t+7}, v{vN}, 1, s4
s_lshl_b32 s53, s47, 13
""")
    if PF:
        a(f"""
s_mul_i32 s6, s43, {320*128}
s_mul_i32 s7, s47, {80*128}
s_add_u32 s6, s6, s7
s_add_u32 s6, s6, {PW}
v_cmp_gt_u32 vcc, 16, v1
v_lshlrev_b32 v{T0}, 7, v1
v_add_u32 v{T0+1}, 0x2000, v{T0}
v_cndmask_b32 v{T0+1}, v{vOOB}, v{T0+1}, vcc
""")
    a(f"""
v_lshrrev_b32 v{vH}, 5, v1
v_bfe_u32 v{vQ2}, v1, 2, 2
v_and_b32 v{vQ}, 3, v1
v_lshlrev_b32 v{vZ}, 4, v0
v_mov_b32 v{vCN}, {CNT}
s_mov_b32 s30, 2560000
s_mov_b32 s31, 0x00020000
s_mov_b32 s42, 66560
s_mov_b32 s43, 0x00020000
""")
    k2_addr_init(a)
    a(f"""
s_waitcnt lgkmcnt(0)
@S2
s_mov_b32 s32, s24
s_mov_b32 s33, s25
buffer_load_dword v{vEND}, v{t+1}, s[32:35], s3 offen
s_mov_b32 s28, s8
s_mov_b32 s29, s9
s_mov_b32 s40, s16
s_mov_b32 s41, s17
""")
    if PF:
        a(f"""
buffer_load_dword v{T0+2}, v{T0}, s[32:35], s6 offen
buffer_load_dword v{T0+3}, v{T0+1}, s[32:35], s6 offen
""")
    a(f"""
buffer_load_dwordx4 v{t+5}, s[28:31], 0 offen lds
buffer_load_dwordx4 v{t+6}, s[28:31], 0 offen offset:1024 lds
""")
    for k in range(4):
        a(f"buffer_load_ushort v{W3R+k}, v{t+7}, s[40:43], 0 offen offset:{256*k}")
    k2_zero(a)
    srd(a, 36, 20, 2560000)
    a(f"""
v_lshlrev_b32 v{vWF}, 4, v1
s_add_u32 s6, s53, {WF}
s_add_u32 s7, s6, 0x1000
s_add_u32 s54, s6, 0x8000
s_add_u32 s55, s6, 0x9000
s_add_u32 s26, s6, 0x10000
s_add_u32 s27, s6, 0x11000
v_and_b32 v{t+2}, 3, v{t+2}
v_xor_b32 v{vGC0}, v{vQ}, v{t+2}
s_lshl_b32 s4, s47, 6
s_add_u32 s4, s4, {PW}
v_lshl_add_u32 v{vGC0}, v{vGC0}, 4, s4
v_add_u32 v{vGC1}, 0xfffffc00, v{vGC0}
v_xor_b32 v{vXA}, v{vH}, v{t+3}
v_lshlrev_b32 v{vXA}, 4, v{vXA}
v_lshl_or_b32 v{vXA}, v{vN}, 8, v{vXA}
v_lshrrev_b32 v{t}, 1, v{vN}
v_lshlrev_b32 v{t+1}, 2, v{vH}
v_sub_u32 v{t}, v{t}, v{t+1}
v_and_b32 v{t+1}, 1, v1
v_lshlrev_b32 v{t+1}, 4, v{t+1}
v_mov_b32 v{t+2}, 0x3f80
v_lshlrev_b32 v{t+1}, v{t+1}, v{t+2}
""")
    for j in range(2):
        for u in range(4):
            a(f"v_cmp_eq_u32 vcc, {8*j+u}, v{t}")
            a(f"v_mov_b32 v{AGG+8*j+2*u}, 0\nv_mov_b32 v{AGG+8*j+2*u+1}, 0")
            a(f"v_cndmask_b32 v{ID+4*j+u}, 0, v{t+1}, vcc")
    a(f"""
s_mov_b32 s3, {REC}
@B3
s_waitcnt lgkmcnt(0)
s_barrier
@B4
s_waitcnt vmcnt({8 if PF else 6})
@A3
v_and_b32 v{vCUR}, 0xffff, v{vEND}
v_lshrrev_b32 v{vEND}, 16, v{vEND}
v_add_u32 v{vCUR}, v{vCUR}, v{vQ}
K2_ROUND:
@B5
v_sub_u32 v{t+1}, v{vEND}, v{vCUR}
v_mad_u32_u24 v{t}, v{vCUR}, 12, v{vRB}
""")
    for i in range(NR):
        a(f"v_cmp_lt_i32 s[{56+2*i}:{57+2*i}], {4*i}, v{t+1}")
    for i in range(NR):
        a(f"""
v_cndmask_b32 v{t+2+i}, v{vOOB}, v{t}, s[{56+2*i}:{57+2*i}]
buffer_load_dwordx3 {vr(RC+4*i,3)}, v{t+2+i}, s[32:35], s3 offen offset:{48*i}
""")
    a("s_mov_b64 exec, 1")
    for i in range(NR):
        a(f"s_bcnt1_i32_b64 s{11+i}, s[{56+2*i}:{57+2*i}]")
    for i in range(1, NR):
        a(f"s_add_u32 s{11+i}, s{11+i}, s{10+i}")
    a(f"""
v_mov_b32 v{t}, s{10+NR}
ds_add_rtn_u32 v{t}, v{vCN}, v{t}
s_mov_b64 exec, -1
""")
    for s in range(8):
        a(f"buffer_load_dwordx4 {vr(WU+4*s,4)}, v{vWF}, s[32:35], {'s6' if s < 4 else 's7'} offen offset:{1024*(s&3)}")
    for i in range(NR):
        a(f"v_mbcnt_lo_u32_b32 v{RC+4*i+3}, s{56+2*i}, 0\nv_mbcnt_hi_u32_b32 v{RC+4*i+3}, s{57+2*i}, v{RC+4*i+3}")
    a(f"""
s_waitcnt lgkmcnt(0)
v_readfirstlane_b32 s10, v{t}
v_mov_b32 v{t+1}, 0x3f80
s_movk_i32 s4, {CAP}
""")
    for i in range(1, NR):
        a(f"s_add_u32 s{10+i}, s{10+i}, s10")
    for i in range(NR):
        p = RC + 4*i + 3
        a(f"""
v_add_u32 v{p}, s{10+i}, v{p}
v_cmp_gt_u32 vcc, s4, v{p}
s_and_b64 s[{56+2*i}:{57+2*i}], vcc, s[{56+2*i}:{57+2*i}]
v_mul_u32_u24 v{t+2+i}, 48, v{p}
v_lshlrev_b32 v{p}, 2, v{p}
""")
    a("@B6")
    for i in range(NR):
        p = RC + 4*i + 3
        a(f"s_mov_b64 exec, s[{56+2*i}:{57+2*i}]")
        if i >= 2: a(f"s_cbranch_execz K2_RB_DONE")
        a(f"""
v_add_u32 v{vCUR}, 4, v{vCUR}
s_waitcnt vmcnt({8+NR-1-i})
v_and_b32 v{t}, 0xffffff00, v{RC+4*i+2}
ds_write_b32 v{p}, v{t} offset:{IDX}
v_and_b32 v{RC+4*i+2}, 0xff, v{RC+4*i+2}
v_add_u32 v{RC+4*i+2}, v{RC+4*i+2}, v{t+2+i}
ds_write_b64 v{t+2+i}, {vr(RC+4*i,2)} offset:{RB+40}
ds_write_b16 v{RC+4*i+2}, v{t+1} offset:{RB}
""")
    a(f"""
K2_RB_DONE:
s_mov_b64 exec, -1
s_waitcnt vmcnt(8)
v_cmp_lt_u32 vcc, v{vCUR}, v{vEND}
s_mov_b64 exec, vcc
ds_write_b32 v{vCN}, v{t+1} offset:4
s_mov_b64 exec, -1
@B7
@A4
s_waitcnt lgkmcnt(0)
s_barrier
@A5
""")
    for u in range(5):
        a(f"ds_read2_b32 {vr(RC+2*u,2)}, v{vIX} offset0:{32*u} offset1:{32*u+16}")
    a(f"ds_read_b64 {vr(RC+10,2)}, v{vCN}")
    def gissue(u, lg):
        a(f"""
s_add_u32 m0, s53, {0x800*(u&3)}
s_waitcnt lgkmcnt({lg})
v_add_u32 v{RC+2*u}, v{RC+2*u}, v{vGC0}
v_add_u32 v{RC+2*u+1}, v{RC+2*u+1}, v{vGC1}
buffer_load_dwordx4 v{RC+2*u}, s[32:35], 0 offen lds
buffer_load_dwordx4 v{RC+2*u+1}, s[32:35], 0 offen offset:1024 lds
""")
    gissue(0, 5)
    for s in range(8):
        a(f"v_xor_b32 v{t}, {32*s}, v{vXA}\nds_read_b128 {vr(XF+4*s,4)}, v{t} offset:{XT}")
    gissue(1, 12)
    a(f"@B8\ns_mov_b32 s4, 0x{NLOG2E:08x}")
    for k in range(4):
        a(f"v_lshlrev_b32 v{E+k}, 16, v{W3R+k}\nv_mul_f32 v{E+k}, s4, v{E+k}")
    w3 = f"""v_cvt_pk_bf16_f32 v{E+4}, v{E}, v{E+1}
v_cvt_pk_bf16_f32 v{E+5}, v{E+2}, v{E+3}
v_lshlrev_b32 v{E+6}, 16, v{E+4}
v_and_b32 v{E+7}, 0xffff0000, v{E+4}
v_lshlrev_b32 v{E+8}, 16, v{E+5}
v_and_b32 v{E+9}, 0xffff0000, v{E+5}
v_sub_f32 v{E}, v{E}, v{E+6}
v_sub_f32 v{E+1}, v{E+1}, v{E+7}
v_sub_f32 v{E+2}, v{E+2}, v{E+8}
v_sub_f32 v{E+3}, v{E+3}, v{E+9}
v_cmp_eq_u32 vcc, 0, v{vH}
v_cvt_pk_bf16_f32 v{E+6}, v{E}, v{E+1}
v_cvt_pk_bf16_f32 v{E+7}, v{E+2}, v{E+3}
v_cndmask_b32 v{B2+6}, v{E+6}, v{E+4}, vcc
v_cndmask_b32 v{B2+7}, v{E+7}, v{E+5}, vcc
v_readfirstlane_b32 s48, v{RC+10}
v_readfirstlane_b32 s51, v{RC+11}""".split("\n")
    for s in range(8):
        a(f"s_waitcnt vmcnt({11-s}) lgkmcnt({7-s})")
        mfma(a, T1, XF+4*s, WU+4*s, None if s == 0 else T1)
        for x in w3[3*s:3*s+3]: a(x)
    gissue(2, 0)
    gissue(3, 0)
    a(f"""
ds_read_b128 {vr(AR,4)}, v{vRA0}
ds_read_b128 {vr(AR+4,4)}, v{vRA1}
s_min_u32 s48, s48, {CAP}
s_add_u32 s48, s48, 31
s_lshr_b32 s48, s48, 5
s_max_u32 s48, s48, 1
s_mov_b32 s49, 0
s_mov_b32 s50, 0
s_add_u32 s52, s53, 0x800
""")
    for r in range(12):
        a(f"v_mul_f32 v{T1+r}, s4, v{T1+r}")
    for r in range(6):
        a(f"v_cvt_pk_bf16_f32 v{B2+r}, v{T1+2*r}, v{T1+2*r+1}")
    a(f"""
v_cndmask_b32 v{B2+4}, 0, v{B2+4}, vcc
v_cndmask_b32 v{B2+5}, 0, v{B2+5}, vcc
@B9
s_waitcnt vmcnt(6)
ds_read_b128 {vr(AP,4)}, v{vPA0}
ds_read_b128 {vr(AP+4,4)}, v{vPA1}
s_waitcnt lgkmcnt(2)
""")
    mfma(a, T0, AR, B2)
    mfma(a, T0, AR+4, B2+4, T0)
    gissue(4, 0)
    mfma(a, T0, AP, ID, T0)
    mfma(a, T0, AP+4, ID+4, T0)
    a("s_nop 7\n@A6\nK2_LOOP:")
    k2_half(a, 0, T0, T1, "K2A")
    a("s_cbranch_scc0 K2_DONE")
    k2_half(a, 1, T1, T0, "K2B")
    a("s_cbranch_scc1 K2_LOOP\nK2_DONE:\n@A7\ns_waitcnt lgkmcnt(0)")
    mfma(a, AGG, M, OH, AGG)
    mfma(a, AGG, M+4, OH+4, AGG)
    a(f"""
s_waitcnt vmcnt(0)
s_cmp_eq_u32 s51, 0
s_cbranch_scc1 K2_EPI
s_barrier
""")
    k2_addr_init(a)
    k2_zero(a)
    a(f"""
s_waitcnt lgkmcnt(0)
s_barrier
s_branch K2_ROUND
K2_EPI:
@A8
""")
    for s in range(8):
        mfma(a, T0, WU+4*s, XF+4*s, None if s == 0 else T0)
    a(f"s_mov_b32 s6, 0x{NLN2:08x}\ns_nop 4")
    for r in range(16):
        a(f"v_mul_f32 v{AGG+r}, s6, v{AGG+r}")
    for r in range(8):
        a(f"v_cvt_pk_bf16_f32 v{M+r}, v{AGG+2*r}, v{AGG+2*r+1}")
    a(f"""
v_add_u32 v232, s53, v{vWF}
ds_write_b128 v232, {vr(M,4)}
ds_write_b128 v232, {vr(M+4,4)} offset:1024
s_waitcnt lgkmcnt(0)
s_barrier
@A9
""")
    for s in range(8):
        a(f"ds_read_b128 {vr(T1+4*s,4)}, v{vWF} offset:{8192*(s>>1) + 1024*(s&1)}")
    a(f"""
v_lshlrev_b32 v232, 1, v{vH}
v_xor_b32 v232, v232, v252
v_lshlrev_b32 v232, 4, v232
v_lshl_or_b32 v232, v248, 6, v232
v_add_u32 v232, s53, v232
v_xor_b32 v233, 16, v232
v_lshrrev_b32 v228, 2, v1
v_bfe_u32 v229, v1, 4, 2
v_xor_b32 v229, v229, v253
v_lshlrev_b32 v229, 4, v229
v_lshl_or_b32 v229, v228, 6, v229
v_add_u32 v229, s53, v229
v_lshlrev_b32 v230, 4, v253
v_lshl_or_b32 v230, v228, 8, v230
s_lshl_b32 s4, s47, 6
s_add_u32 s4, s4, s5
v_add_u32 v230, s4, v230
v_add_u32 v231, 0x1000, v230
v_add_u32 v234, 16, v228
v_cmp_gt_u32 s[56:57], s46, v228
v_cmp_gt_u32 s[58:59], s46, v234
s_mov_b32 s6, 0x{NLOG2E:08x}
""")
    for s in range(8):
        a(f"s_waitcnt lgkmcnt({7-s})")
        mfma(a, T0, WU+32+4*s, T1+4*s, T0)
    a("s_nop 7\ns_nop 7")
    for r in range(16):
        a(f"v_mul_f32 v{E+r}, s6, v{T0+r}")
    for r in range(16):
        a(f"v_exp_f32 v{E+r}, v{E+r}")
    for r in range(8):
        a(f"v_pk_add_f32 {vr(E+2*r,2)}, {vr(E+2*r,2)}, 1.0 op_sel_hi:[1,0]")
    for r in range(16):
        a(f"v_rcp_f32 v{E+r}, v{E+r}")
    for r in range(8):
        a(f"v_pk_mul_f32 {vr(E+2*r,2)}, {vr(E+2*r,2)}, {vr(T0+2*r,2)}")
    for r in range(8):
        a(f"v_cvt_pk_bf16_f32 v{M+r}, v{E+2*r}, v{E+2*r+1}")
    a(f"""
ds_write_b128 v232, {vr(M,4)} offset:2048
ds_write_b128 v233, {vr(M+4,4)} offset:2048
s_waitcnt lgkmcnt(0)
ds_read_b128 {vr(AP,4)}, v229 offset:2048
ds_read_b128 {vr(AP+4,4)}, v229 offset:3072
s_mov_b64 exec, s[56:57]
s_waitcnt lgkmcnt(1)
buffer_store_dwordx4 {vr(AP,4)}, v230, s[36:39], 0 offen
s_mov_b64 exec, s[58:59]
s_waitcnt lgkmcnt(0)
buffer_store_dwordx4 {vr(AP+4,4)}, v231, s[36:39], 0 offen
@P1
K2_END:
s_endpgm
""")

def desc(name, vg):
    return f""".amdhsa_kernel {name}
  .amdhsa_next_free_vgpr {vg}
  .amdhsa_next_free_sgpr 96
  .amdhsa_accum_offset {vg}
  .amdhsa_group_segment_fixed_size 0
  .amdhsa_kernarg_size 72
  .amdhsa_user_sgpr_count 2
  .amdhsa_user_sgpr_kernarg_segment_ptr 1
  .amdhsa_system_sgpr_workgroup_id_x 1
.end_amdhsa_kernel
"""

def main(out):
    ref = open(f"cdna_kernels/{NAME}.s.ref").read().split("\n")
    hdr = [l for l in ref if l.startswith(";") and "@launch" not in l and "Override" not in l and "grid=ceil" not in l]
    k1n, k2n = "mpnn_prep_kernel", f"{NAME}_kernel"
    t = "\n".join(hdr) + "\n"
    t += f"; @launch kernel={k1n} grid=({K1_GRID},1,1) block=(640,1,1) lds=65536\n"
    t += f"; @launch kernel={k2n} grid=(512,1,1) block=(256,1,1) lds={K2_LDS}\n"
    t += '.amdgcn_target "amdgcn-amd-amdhsa--gfx950"\n.text\n'
    for n, f in ((k1n, k1), (k2n, k2)):
        a = A(); f(a)
        t += f".globl {n}\n.p2align 8\n.type {n},@function\n{n}:\n" + a.text()
    t += '.section .rodata,"a"\n.p2align 6\n' + desc(k1n, 96) + ".p2align 6\n" + desc(k2n, 256)
    open(out, "w").write(t)

if __name__ == "__main__":
    main(sys.argv[1] if len(sys.argv) > 1 else f"cdna_kernels/{NAME}.s")
```

```python
import sys, struct, os
sys.path.insert(0, os.path.dirname(os.path.abspath(__file__)))
import haz
VERB = bool(os.environ.get('VERB'))

NAME = "gather_scatter__mpnn_edge_mlp__graph"
def f2u(x): return struct.unpack("<I", struct.pack("<f", x))[0]
NLOG2E = f2u(-1.4426950408889634)
NLN2 = f2u(-0.6931471805599453)

PW = 4096
PSTR = 0x280000
QW = PW + PSTR
UW = PW + 2 * PSTR
REC = 0x780000
TAB = 0x960000
WF = 0x980000
WS_SIZE = 0x990000
K1SC = os.environ.get("K1SC", "")
K2SC = os.environ.get("K2SC", "")
K1_LDS = 90112
ROTX = int(os.environ.get("ROTX", "16384"))
ROTW = int(os.environ.get("ROTW", "128"))
NCH = 64
CHE = 2500
K1_GRID = 256

class A:
    def __init__(s): s.l = []
    def __call__(s, t):
        for x in t.strip("\n").split("\n"):
            if x.strip().startswith("@"):
                x = x.strip()
                if x[1] in "SR": stamp(s, int(x[2:]), x[1] == "R")
                elif x[1] in "AB":
                    if PROFM == x[1]: stamp(s, int(x[2:]))
                else: prof_out(s, int(x[2:]), 32)
                continue
            s.l.append("    " + x.strip() if not x.strip().endswith(":") else x.strip())
    def text(s): return "\n".join(haz.pad(s.l, VERB)) + "\n"

def srd(a, d, b, n):
    a(f"s_mov_b32 s{d}, s{b}\ns_mov_b32 s{d+1}, s{b+1}\ns_mov_b32 s{d+2}, {n}\ns_mov_b32 s{d+3}, 0x00020000")

PROF = bool(os.environ.get('PROF'))
PROFB = 0x1000000
PROFM = os.environ.get('PROF', '')
def stamp(a, i, real=False):
    if PROF:
        a(f"s_{'memrealtime' if real else 'memtime'} s[{72+2*i}:{73+2*i}]")
def prof_out(a, kid, wsr):
    if not PROF: return
    if kid == 0: stamp(a, 9)
    a("s_waitcnt vmcnt(0)")
    stamp(a, 10); stamp(a, 11, True)
    a(f"""
s_mov_b64 exec, 1
s_waitcnt lgkmcnt(0)
v_lshrrev_b32 v1, 6, v0
v_lshlrev_b32 v1, 6, v1
s_lshl_b32 s3, s2, 10
s_add_u32 s3, s3, {PROFB + kid*0x100000}
s_mov_b32 s{wsr+2}, 0x2000000
""")
    for j in range(3):
        for u in range(4):
            a(f"v_mov_b32 v{4+u}, s{72+2*(4*j+u)}")
        a(f"buffer_store_dwordx4 v[4:7], v1, s[{wsr}:{wsr+3}], s3 offen offset:{16*j}\ns_nop 1")
    a("s_getreg_b32 s4, hwreg(HW_REG_HW_ID)\ns_getreg_b32 s5, hwreg(HW_REG_XCC_ID)\nv_mov_b32 v4, s4\nv_mov_b32 v5, s5\nv_mov_b32 v6, s48\nv_mov_b32 v7, 1")
    a(f"buffer_store_dwordx4 v[4:7], v1, s[{wsr}:{wsr+3}], s3 offen offset:48")

def vr(b, n): return f"v[{b}:{b+n-1}]"

def k1(a):
    XA, XB, WA, C0, C1, PK, ST = 64, 96, 32, 128, 144, 16, 24
    a(f"""
s_cmp_ge_u32 s2, {K1_GRID}
s_cbranch_scc1 K1_END
@R0
@S1
s_load_dwordx16 s[8:23], s[0:1], 0
s_load_dwordx2 s[24:25], s[0:1], 64
s_cmp_lt_u32 s2, {NCH}
s_cbranch_scc1 K1_SORT
""")
    a(f"""
v_lshrrev_b32 v2, 6, v0
v_and_b32 v1, 63, v0
s_lshr_b32 s44, s2, 6
v_readfirstlane_b32 s27, v2
s_and_b32 s3, s2, 63
s_cmp_ge_u32 s27, 8
s_cbranch_scc1 K1_END
v_lshrrev_b32 v2, 4, v1
v_and_b32 v3, 15, v1
v_lshlrev_b32 v4, 2, v2
v_xor_b32 v4, v3, v4
v_lshlrev_b32 v4, 4, v4
v_lshl_or_b32 v4, v2, 8, v4
s_lshl_b32 s4, s27, 2
v_add_u32 v5, s4, v2
v_and_b32 v6, 15, v5
v_xor_b32 v6, v3, v6
v_lshlrev_b32 v6, 4, v6
v_lshl_or_b32 v6, v5, 8, v6
s_mul_i32 s5, s3, 40960
s_lshl_b32 s6, s27, 12
s_cmp_eq_u32 s44, 2
s_cselect_b32 s49, 0x8000, 0
s_mov_b32 s47, 3
s_movk_i32 s48, 1024
s_cmp_lg_u32 s3, 63
s_cbranch_scc1 K1_G1
s_cmp_lg_u32 s44, 3
s_cbranch_scc1 K1_END
s_mov_b32 s47, 2
s_movk_i32 s48, 0x800
s_mov_b32 s49, 0x8000
K1_G1:
s_add_u32 s49, s49, s6
s_and_b32 s26, s27, 3
s_mov_b32 s38, 65536
s_mov_b32 s39, 0x00020000
s_mov_b32 s30, 2560000
s_mov_b32 s31, 0x00020000
s_lshl_b32 s7, s27, 10
s_mul_i32 s4, s44, {ROTX}
""")
    for b in range(5):
        a(f"""
s_add_u32 s{52+b}, s4, {8192*b}
s_cmp_ge_u32 s{52+b}, 40960
s_cselect_b32 s57, 40960, 0
s_sub_u32 s{52+b}, s{52+b}, s57
s_cmp_ge_u32 s{52+b}, 40960
s_cselect_b32 s57, 40960, 0
s_sub_u32 s{52+b}, s{52+b}, s57
s_add_u32 s{52+b}, s{52+b}, s5
""")
    a(f"s_mul_i32 s4, s3, {ROTW}")
    for i in range(4):
        a(f"s_add_u32 s{60+i}, s4, {1024*i}\ns_and_b32 s{60+i}, s{60+i}, 0xc00")
    a(f"""
s_add_u32 m0, s7, 32768
s_cmp_eq_u32 s44, 3
s_waitcnt lgkmcnt(0)
@S2
s_mov_b32 s28, s8
s_mov_b32 s29, s9
buffer_load_dwordx4 v6, s[28:31], s52 offen lds
s_cselect_b32 s36, s18, s16
s_cselect_b32 s37, s19, s17
s_add_u32 m0, s7, {32768 + 8192}
s_nop 0
buffer_load_dwordx4 v6, s[28:31], s53 offen lds
""")
    for i in range(4):
        a(f"""
s_add_u32 m0, s6, s{60+i}
s_add_u32 s4, s49, s{60+i}
buffer_load_dwordx4 v4, s[36:39], s4 offen lds
""")
    for b in range(2, 5):
        a(f"""
s_add_u32 m0, s7, {32768 + 8192*b}
s_nop 0
buffer_load_dwordx4 v6, s[28:31], s{52+b} offen lds
""")
    srd(a, 32, 24, WS_SIZE)
    a(f"""
v_and_b32 v8, 1, v1
v_lshlrev_b32 v8, 4, v8
v_bfe_u32 v9, v1, 1, 1
v_lshl_or_b32 v8, v9, 2, v8
v_bfe_u32 v9, v1, 4, 1
v_lshl_or_b32 v8, v9, 3, v8
v_bfe_u32 v10, v1, 2, 2
v_lshrrev_b32 v11, 5, v1
v_lshlrev_b32 v12, s47, v11
v_add_u32 v12, v12, v10
v_lshrrev_b32 v9, 3, v8
s_lshl_b32 s4, s26, 2
v_add_u32 v9, s4, v9
v_lshlrev_b32 v10, 2, v10
v_xor_b32 v9, v9, v10
v_lshlrev_b32 v9, 4, v9
v_lshl_or_b32 v9, v12, 8, v9
v_and_b32 v8, 4, v8
v_lshl_or_b32 v8, v8, 1, v9
v_add_u32 v9, s48, v8
v_and_b32 v12, 31, v1
v_xor_b32 v13, v11, v3
v_lshlrev_b32 v13, 4, v13
v_lshl_or_b32 v13, v12, 8, v13
s_lshr_b32 s45, s27, 2
s_lshl_b32 s4, s45, 13
s_add_u32 s4, s4, 32768
v_add_u32 v13, s4, v13
""")
    for s in range(8):
        a(f"v_xor_b32 v{ST+s}, {32*s}, v13")
    a(f"""
s_lshl_b32 s4, s27, 11
s_add_u32 s4, s4, 73728
v_bfe_u32 v14, v1, 2, 2
v_lshlrev_b32 v15, 1, v11
v_xor_b32 v14, v14, v15
v_lshlrev_b32 v14, 4, v14
v_lshl_or_b32 v14, v12, 6, v14
v_add_u32 v14, s4, v14
v_xor_b32 v15, 16, v14
v_and_b32 v2, 3, v2
v_and_b32 v3, 3, v1
v_xor_b32 v2, v2, v3
v_lshlrev_b32 v2, 4, v2
v_lshrrev_b32 v5, 2, v1
v_lshl_or_b32 v2, v5, 6, v2
v_add_u32 v2, s4, v2
v_lshlrev_b32 v3, 4, v3
v_lshl_or_b32 v3, v5, 8, v3
v_add_u32 v7, 0x1000, v3
s_lshl_b32 s4, s26, 6
s_mul_i32 s6, s44, {PSTR}
s_add_u32 s4, s4, s6
s_add_u32 s4, s4, {(PW - PSTR) & 0xffffffff}
s_cmp_eq_u32 s45, 0
s_cselect_b32 s52, s52, s53
s_cselect_b32 s53, s54, s55
s_add_u32 s52, s52, s4
s_add_u32 s53, s53, s4
s_add_u32 s54, s56, s4
s_cmp_eq_u32 s44, 3
s_cselect_b32 s6, 1.0, 0x{NLOG2E:08x}
s_waitcnt vmcnt(3)
@S3
s_barrier
@S4
""")
    def xrd(X, blk, s): return f"ds_read_b128 {vr(X+4*s,4)}, v{ST+s} offset:{16384*blk}"
    def post(C):
        l = [f"v_mul_f32 v{C+r}, s6, v{C+r}" for r in range(16)]
        l += [f"v_cvt_pk_bf16_f32 v{PK+r}, v{C+2*r}, v{C+2*r+1}" for r in range(8)]
        l += [f"ds_write_b128 v14, {vr(PK,4)}", f"ds_write_b128 v15, {vr(PK+4,4)}",
              f"ds_read_b128 {vr(C,4)}, v2", f"ds_read_b128 {vr(C+4,4)}, v2 offset:1024"]
        return l
    def store(C, so):
        a(f"""
s_waitcnt lgkmcnt(1)
buffer_store_dwordx4 {vr(C,4)}, v3, s[32:35], s{so} offen{K1SC}
s_waitcnt lgkmcnt(0)
buffer_store_dwordx4 {vr(C+4,4)}, v7, s[32:35], s{so} offen{K1SC}
""")
    def rd3(s):
        a(f"ds_read_b64_tr_b16 v[{WA+4*s}:{WA+1+4*s}], v8 offset:{4096*s}")
        a(f"ds_read_b64_tr_b16 v[{WA+2+4*s}:{WA+3+4*s}], v9 offset:{4096*s}")
        a(xrd(XA, 0, s))
    for s in range(4): rd3(s)
    for s in range(8):
        if s < 4: rd3(s + 4)
        a(f"s_waitcnt lgkmcnt({12 if s < 4 else 3*(7-s)})")
        mfma(a, C0, WA+4*s, XA+4*s, None if s == 0 else C0)
    a(f"""
s_cmp_eq_u32 s3, 63
s_cbranch_scc1 K1_PREP
s_waitcnt vmcnt(0)
@S5
s_barrier
@S6
""")
    for s in range(8): a(xrd(XB, 1, s))
    fill = post(C0)
    pre = fill[:8]; fill = fill[8:] + [xrd(XA, 2, s) for s in range(8)]
    for x in pre: a(x)
    cuts = [4, 8, 12, 16, 20, 24, 28, 28]
    for s in range(8):
        if s < 4: a(f"s_waitcnt lgkmcnt({7-s if s < 3 else 0})")
        mfma(a, C1, WA+4*s, XB+4*s, None if s == 0 else C1)
        for x in fill[(cuts[s-1] if s else 0):cuts[s]]: a(x)
    a("@S7")
    store(C0, 52)
    a("s_cmp_eq_u32 s45, 0\ns_cbranch_scc0 K1_G2")
    fill = post(C1)
    CX = XB
    cuts = [0, 4, 9, 14, 19, 24, 28, 28]
    for s in range(8):
        mfma(a, CX, WA+4*s, XA+4*s, None if s == 0 else CX)
        for x in fill[(cuts[s-1] if s else 0):cuts[s]]: a(x)
    store(C1, 53)
    for x in post(CX): a(x)
    store(CX, 54)
    a("@P0\ns_endpgm\nK1_G2:\ns_nop 5")
    for x in post(C1): a(x)
    store(C1, 53)
    a(f"""
@P0
s_endpgm
K1_PREP:
s_waitcnt vmcnt(0)
s_cmp_ge_u32 s27, 4
s_cbranch_scc1 K1_END
s_lshl_b32 s6, s26, 13
s_add_u32 s4, s6, {WF}
v_lshlrev_b32 v2, 4, v1
v_add_u32 v2, s4, v2
v_add_u32 v3, 0x1000, v2
s_waitcnt lgkmcnt(0)
""")
    for s in range(8):
        a(f"buffer_store_dwordx4 {vr(WA+4*s,4)}, v{2+(s>>2)}, s[32:35], 0 offen offset:{1024*(s&3)}{K1SC}")
    a("s_endpgm")
    IMG = 8192
    a(f"""
K1_SORT:
s_mul_i32 s3, s2, {CHE*4}
v_lshlrev_b32 v28, 4, v0
v_add_u32 v1, s3, v28
v_lshlrev_b32 v2, 1, v1
s_mov_b32 s30, 640000
s_mov_b32 s31, 0x00020000
s_mov_b32 s38, 640000
s_mov_b32 s39, 0x00020000
s_mov_b32 s42, 1280000
s_mov_b32 s43, 0x00020000
s_movk_i32 s4, 625
v_cmp_gt_u32 s[26:27], s4, v0
v_lshlrev_b32 v3, 2, v0
v_mov_b32 v30, 0
v_mov_b32 v31, 1
s_waitcnt lgkmcnt(0)
@S2
s_mov_b32 s28, s14
s_mov_b32 s29, s15
buffer_load_dwordx4 v[4:7], v1, s[28:31], 0 offen
s_mov_b32 s36, s12
s_mov_b32 s37, s13
s_mov_b32 s40, s10
s_mov_b32 s41, s11
ds_write_b32 v3, v30
s_waitcnt lgkmcnt(0)
s_barrier
buffer_load_dwordx4 v[8:11], v1, s[36:39], 0 offen
buffer_load_dwordx4 v[12:15], v2, s[40:43], 0 offen
buffer_load_dwordx4 v[24:27], v2, s[40:43], 0 offen offset:16
s_movk_i32 s5, 3355
s_mov_b32 s6, 1280180
v_and_b32 v3, 63, v0
v_lshlrev_b32 v3, 5, v3
""")
    srd(a, 32, 24, WS_SIZE)
    a("s_mov_b64 exec, s[26:27]\ns_waitcnt vmcnt(3)\n@S3")
    for i in range(4):
        a(f"""
v_mul_u32_u24 v{4+i}, s5, v{4+i}
v_lshrrev_b32 v{32+i}, 16, v{4+i}
v_lshlrev_b32 v{32+i}, 2, v{32+i}
ds_add_rtn_u32 v{36+i}, v{32+i}, v31
""")
    for i in range(4):
        a(f"""
v_and_b32 v{4+i}, 0xffff, v{4+i}
v_mul_hi_u32_u24 v{4+i}, s6, v{4+i}
v_lshlrev_b32 v{4+i}, 1, v{4+i}
""")
    a(f"""
v_cmp_gt_u32 vcc, 64, v0
s_lshl_b32 s7, s2, 11
s_add_u32 s7, s7, {TAB}
s_waitcnt lgkmcnt(0)
@S4
s_barrier
s_cbranch_vccz K1_S2
ds_read_b128 v[48:51], v3
ds_read_b128 v[52:55], v3 offset:16
s_waitcnt lgkmcnt(0)
""")
    for j in range(1, 8):
        a(f"v_add_u32 v{48+j}, v{48+j}, v{47+j}")
    a(f"""
v_mov_b32 v56, v55
s_nop 1
v_add_u32_dpp v56, v56, v56 row_shr:1 row_mask:0xf bank_mask:0xf bound_ctrl:0
s_nop 1
v_add_u32_dpp v56, v56, v56 row_shr:2 row_mask:0xf bank_mask:0xf bound_ctrl:0
s_nop 1
v_add_u32_dpp v56, v56, v56 row_shr:4 row_mask:0xf bank_mask:0xf bound_ctrl:0
s_nop 1
v_add_u32_dpp v56, v56, v56 row_shr:8 row_mask:0xf bank_mask:0xf bound_ctrl:0
s_nop 1
v_add_u32_dpp v56, v56, v56 row_bcast:15 row_mask:0xa bank_mask:0xf
s_nop 1
v_add_u32_dpp v56, v56, v56 row_bcast:31 row_mask:0xc bank_mask:0xf
v_sub_u32 v56, v56, v55
""")
    for j in range(1, 8):
        a(f"v_add_u32 v{56+j}, v56, v{47+j}")
    a(f"""
v_add_u32 v64, v56, v55
ds_write_b128 v3, v[56:59] offset:4096
ds_write_b128 v3, v[60:63] offset:4112
""")
    for j in range(8):
        a(f"v_lshl_or_b32 v{48+j}, v{57+j}, 16, v{56+j}")
    a(f"""
s_waitcnt lgkmcnt(0)
K1_S2:
s_barrier
@S5
ds_read_b32 v40, v32 offset:4096
ds_read_b32 v41, v33 offset:4096
ds_read_b32 v42, v34 offset:4096
ds_read_b32 v43, v35 offset:4096
s_mul_i32 s3, s2, {CHE*12}
s_add_u32 s3, s3, {REC}
s_movk_i32 s4, {IMG}
s_waitcnt vmcnt(2)
@S6
""")
    for i in range(4):
        a(f"v_lshl_or_b32 v{4+i}, v{8+i}, 8, v{4+i}")
    er = [12, 14, 24, 26]
    for i in range(4):
        a(f"""
s_waitcnt lgkmcnt({3+i})
v_add_u32 v{40+i}, v{40+i}, v{36+i}
v_mad_u32_u24 v{40+i}, v{40+i}, 12, s4
""")
        if i in (0, 2): a(f"s_waitcnt vmcnt({1 - i//2})")
        a(f"""
ds_write2_b32 v{40+i}, v{er[i]}, v{er[i]+1} offset1:1
ds_write_b32 v{40+i}, v{4+i} offset:8
""")
    a(f"""
s_mov_b64 exec, -1
s_cbranch_vccz K1_S3
buffer_store_dwordx4 v[48:51], v3, s[32:35], s7 offen{K1SC}
buffer_store_dwordx4 v[52:55], v3, s[32:35], s7 offen offset:16{K1SC}
K1_S3:
s_movk_i32 s4, {1875 - 1280}
v_cmp_gt_u32 vcc, s4, v0
s_add_u32 s5, s3, 10240
s_add_u32 s6, s3, 20480
s_waitcnt lgkmcnt(0)
@S7
s_barrier
@S8
ds_read_b128 v[4:7], v28 offset:{IMG}
ds_read_b128 v[8:11], v28 offset:{IMG+10240}
ds_read_b128 v[12:15], v28 offset:{IMG+20480}
s_waitcnt lgkmcnt(2)
buffer_store_dwordx4 v[4:7], v28, s[32:35], s3 offen{K1SC}
s_waitcnt lgkmcnt(1)
buffer_store_dwordx4 v[8:11], v28, s[32:35], s5 offen{K1SC}
s_mov_b64 exec, vcc
s_waitcnt lgkmcnt(0)
buffer_store_dwordx4 v[12:15], v28, s[32:35], s6 offen{K1SC}
@P0
K1_END:
s_endpgm
""")

RING = 0; RB = 32768; IDX = RB + 20480; NZ = 6; XT = RB + 24576; CNT = XT + 8192; K2_LDS = CNT + 16
CAP = 416
T0, T1, E, AGG, M, AP, AR, OH, ID, B2, XF, WU, RC = 16, 32, 48, 64, 80, 88, 96, 104, 112, 120, 128, 160, 224
vPA0, vPA1, vRA0, vRA1, vTR, vIX, vGC0, vGC1, vCUR, vEND, vWF, vH, vG0, vG1 = 2, 3, 4, 5, 6, 7, 8, 9, 10, 11, 12, 13, 14, 15
W3R = 244
vN, vRB, vZ, vCN, vQ2, vQ, vOOB, vXA = 248, 249, 250, 251, 252, 253, 254, 255
NR = 5
IDXM = os.environ.get("IDXM", "0xffffff00")
GPRE = int(os.environ.get("GPRE", "2"))
PF = int(os.environ.get("PF", "0"))

def mfma(a, d, x, y, c=None):
    cc = "0" if c is None else vr(c, 16)
    a(f"v_mfma_f32_32x32x16_bf16 {vr(d,16)}, {vr(x,4)}, {vr(y,4)}, {cc}")

def k2_half(a, par, Tc, Tn, name):
    np_ = par ^ 1
    a(f"""
s_cmp_lg_u32 s50, 0
s_cbranch_scc1 {name}_W2
s_waitcnt vmcnt(6) lgkmcnt(0)
s_branch {name}_W3
{name}_W2:
s_waitcnt vmcnt(16) lgkmcnt(0)
{name}_W3:
""")
    if par == 1:
        a(f"""
v_xor_b32 v{vPA0}, 0x1000, v{vPA0}
v_xor_b32 v{vPA1}, 0x1000, v{vPA1}
""")
    ro = 1536 * (par + 1)
    a(f"""
ds_read_b128 {vr(AP,4)}, v{vPA0} offset:{2048*np_}
ds_read_b128 {vr(AP+4,4)}, v{vPA1} offset:{2048*np_}
ds_read_b128 {vr(AR,4)}, v{vRA0} offset:{ro}
ds_read_b128 {vr(AR+4,4)}, v{vRA1} offset:{ro}
ds_read2_b32 v[{vG0}:{vG1}], v{vIX} offset0:{32*(5+par)} offset1:{32*(5+par)+16}
s_setprio 1
""")
    for r in range(16):
        if r == 0: mfma(a, AGG, M, OH, AGG)
        if r == 3: mfma(a, AGG, M+4, OH+4, AGG)
        a(f"v_exp_f32 v{E+r}, v{Tc+r}")
    a("s_setprio 0")
    for r in range(8):
        a(f"v_pk_add_f32 {vr(E+2*r,2)}, {vr(E+2*r,2)}, 1.0 op_sel_hi:[1,0]")
    a(f"""
s_waitcnt lgkmcnt(0)
v_add_u32 v{vG0}, v{vG0}, v{vGC0}
v_add_u32 v{vG1}, v{vG1}, v{vGC1}
s_mov_b32 m0, s52
s_add_u32 s52, s52, 0x800
buffer_load_dwordx4 v{vG0}, s[32:35], 0 offen lds
buffer_load_dwordx4 v{vG1}, s[32:35], 0 offen offset:1024 lds
s_and_b32 s52, s52, 0x1fff
s_or_b32 s52, s52, s53
""")
    to = 1536 * par
    for m in range(2):
        a(f"ds_read_b64_tr_b16 {vr(OH+4*m,2)}, v{vTR} offset:{to + 48*16*m}")
        a(f"ds_read_b64_tr_b16 {vr(OH+4*m+2,2)}, v{vTR} offset:{to + 48*16*m + 48*8}")
    if par == 0:
        a(f"""
s_cmp_lg_u32 s50, 0
s_cbranch_scc1 {name}_NW
s_add_u32 s4, s49, 6
s_cmp_lt_u32 s4, s48
s_cbranch_scc1 {name}_NW
s_mov_b32 s50, 1
""")
        for s in range(8):
            so = "s54" if s < 4 else "s55"
            a(f"buffer_load_dwordx4 {vr(WU+4*s,4)}, v{vWF}, s[32:35], {so} offen offset:{1024*(s&3)}")
        a(f"buffer_load_dwordx4 {vr(XF+16,4)}, v{XF+24}, s[32:35], s9 offen")
        a(f"buffer_load_dwordx4 {vr(XF+20,4)}, v{XF+24}, s[32:35], s9 offen offset:16")
        a(f"{name}_NW:")
    a("s_setprio 1")
    for r in range(16):
        if r == 0: mfma(a, Tn, AP, ID)
        if r == 3: mfma(a, Tn, AP+4, ID+4, Tn)
        if r == 6: mfma(a, Tn, AR, B2, Tn)
        if r == 9: mfma(a, Tn, AR+4, B2+4, Tn)
        a(f"v_rcp_f32 v{E+r}, v{E+r}")
    a("s_setprio 0")
    if par == 1:
        a(f"""
v_add_u32 v{vRA0}, 0xc00, v{vRA0}
v_add_u32 v{vRA1}, 0xc00, v{vRA1}
v_add_u32 v{vTR}, 0xc00, v{vTR}
v_add_u32 v{vIX}, 0x100, v{vIX}
""")
    for r in range(8):
        a(f"v_pk_mul_f32 {vr(E+2*r,2)}, {vr(E+2*r,2)}, {vr(Tc+2*r,2)}")
    for r in range(8):
        a(f"v_cvt_pk_bf16_f32 v{M+r}, v{E+2*r}, v{E+2*r+1}")
    a("s_add_u32 s49, s49, 1\ns_cmp_lt_u32 s49, s48")

def k2_addr_init(a):
    t = AP
    a(f"""
v_mul_u32_u24 v{vRA1}, 48, v{vN}
v_lshl_add_u32 v{vRA0}, v{vH}, 4, v{vRA1}
v_add_u32 v{vRA0}, {RB}, v{vRA0}
v_add_u32 v{vRA1}, {RB+32}, v{vRA1}
v_lshl_add_u32 v{vTR}, v{vH}, 2, v{vQ2}
v_mul_u32_u24 v{vTR}, 48, v{vTR}
v_bfe_u32 v{t}, v1, 4, 1
v_lshl_or_b32 v{t}, v{t}, 2, v{vQ}
v_lshl_add_u32 v{vTR}, v{t}, 3, v{vTR}
v_add_u32 v{vTR}, {RB}, v{vTR}
v_and_b32 v{vIX}, 60, v1
v_add_u32 v{vIX}, {IDX}, v{vIX}
v_xor_b32 v{vPA0}, v{vQ2}, v{vH}
v_lshlrev_b32 v{vPA0}, 4, v{vPA0}
v_lshl_or_b32 v{vPA0}, v{vN}, 6, v{vPA0}
v_add_u32 v{vPA0}, s53, v{vPA0}
v_xor_b32 v{vPA1}, 32, v{vPA0}
""")
    for r in range(8):
        a(f"v_mov_b32 v{M+r}, 0\nv_mov_b32 v{OH+r}, 0")

def k2_zero(a):
    for j in range(NZ):
        a(f"ds_write_b128 v{vZ}, {vr(M,4)} offset:{RB + 4096*j}")
    a(f"ds_write_b64 v{vCN}, {vr(M,2)}")

def k2(a):
    t = AR
    UB = XF + 16
    a(f"""
s_cmpk_ge_u32 s2, 512
s_cbranch_scc1 K2_END
@R0
@S1
s_load_dwordx2 s[24:25], s[0:1], 64
s_load_dwordx2 s[16:17], s[0:1], 32
s_load_dwordx2 s[20:21], s[0:1], 48
v_lshrrev_b32 v{vH}, 6, v0
v_and_b32 v1, 63, v0
s_and_b32 s44, s2, 7
v_readfirstlane_b32 s47, v{vH}
s_lshl_b32 s44, s44, 6
s_lshr_b32 s43, s2, 3
s_add_u32 s44, s44, s43
v_lshrrev_b32 v{t}, 2, v0
v_lshlrev_b32 v{t+1}, 11, v{t}
s_lshl_b32 s3, s44, 2
s_add_u32 s3, s3, {TAB}
s_mov_b32 s34, {WS_SIZE}
s_mov_b32 s35, 0x00020000
s_mul_i32 s45, s44, 1280169
s_add_u32 s46, s45, {1280169+65535}
s_add_u32 s45, s45, 65535
s_lshr_b32 s45, s45, 16
s_lshr_b32 s46, s46, 16
s_min_u32 s46, s46, 10000
s_sub_u32 s46, s46, s45
s_movk_i32 s4, {CHE*12}
v_mul_u32_u24 v{vRB}, s4, v{t}
v_bfrev_b32 v{vOOB}, 2
v_lshrrev_b32 v{vH}, 5, v1
v_bfe_u32 v{vQ2}, v1, 2, 2
v_and_b32 v{vQ}, 3, v1
v_and_b32 v{vN}, 31, v1
s_lshl_b32 s5, s45, 8
s_lshl_b32 s4, s47, 6
s_add_u32 s5, s5, s4
v_lshrrev_b32 v{t+2}, 2, v1
v_lshlrev_b32 v{t+5}, 4, v{vQ}
v_lshl_or_b32 v{t+5}, v{t+2}, 8, v{t+5}
v_lshlrev_b32 v{t+6}, 5, v{vH}
v_lshl_or_b32 v{XF+24}, v{vN}, 8, v{t+6}
s_add_u32 s6, s5, {QW}
s_add_u32 s8, s5, {QW + 4096 - 1024}
s_add_u32 s9, s5, {UW}
s_lshl_b32 s7, s47, 11
s_add_u32 s7, s7, {XT}
s_mov_b32 m0, s7
s_add_u32 s4, s4, 65536
v_lshl_add_u32 v{t+7}, v{vN}, 1, s4
s_lshl_b32 s53, s47, 13
v_lshlrev_b32 v{vZ}, 4, v0
v_mov_b32 v{vCN}, {CNT}
s_mov_b32 s42, 66560
s_mov_b32 s43, 0x00020000
""")
    k2_addr_init(a)
    a(f"""
s_waitcnt lgkmcnt(0)
@S2
s_mov_b32 s32, s24
s_mov_b32 s33, s25
buffer_load_dword v{vEND}, v{t+1}, s[32:35], s3 offen
s_mov_b32 s40, s16
s_mov_b32 s41, s17
buffer_load_dwordx4 v{t+5}, s[32:35], s6 offen lds
s_mov_b64 exec, 0xffff
buffer_load_dwordx4 v{t+5}, s[32:35], s8 offen offset:1024 lds
s_mov_b64 exec, -1
""")
    for k in range(4):
        a(f"buffer_load_ushort v{W3R+k}, v{t+7}, s[40:43], 0 offen offset:{256*k}")
    k2_zero(a)
    srd(a, 36, 20, 2560000)
    a(f"""
v_lshlrev_b32 v{vWF}, 4, v1
s_add_u32 s54, s53, {WF}
s_add_u32 s55, s54, 0x1000
v_bfe_u32 v{t+2}, v1, 4, 2
v_xor_b32 v{vGC0}, v{vQ}, v{t+2}
s_lshl_b32 s4, s47, 6
s_add_u32 s4, s4, {PW}
v_lshl_add_u32 v{vGC0}, v{vGC0}, 4, s4
v_add_u32 v{vGC1}, 0xfffffc00, v{vGC0}
v_lshl_add_u32 v{vXA}, v{vH}, 3, v{vQ2}
v_and_b32 v{t+2}, 1, v{t+2}
v_lshl_or_b32 v{t+2}, v{t+2}, 2, v{vQ}
v_lshlrev_b32 v{t+2}, 3, v{t+2}
v_lshl_or_b32 v{vXA}, v{vXA}, 6, v{t+2}
v_add_u32 v{vXA}, s7, v{vXA}
v_lshrrev_b32 v{t}, 1, v{vN}
v_lshlrev_b32 v{t+1}, 2, v{vH}
v_sub_u32 v{t}, v{t}, v{t+1}
v_and_b32 v{t+1}, 1, v1
v_lshlrev_b32 v{t+1}, 4, v{t+1}
v_mov_b32 v{t+2}, 0x3f80
v_lshlrev_b32 v{t+1}, v{t+1}, v{t+2}
""")
    for j in range(2):
        for u in range(4):
            a(f"v_cmp_eq_u32 vcc, {8*j+u}, v{t}")
            a(f"v_mov_b32 v{AGG+8*j+2*u}, 0\nv_mov_b32 v{AGG+8*j+2*u+1}, 0")
            a(f"v_cndmask_b32 v{ID+4*j+u}, 0, v{t+1}, vcc")
    a(f"""
s_mov_b32 s3, {REC}
@B3
s_waitcnt lgkmcnt(0)
s_barrier
@B4
s_waitcnt vmcnt(6)
@A3
v_and_b32 v{vCUR}, 0xffff, v{vEND}
v_lshrrev_b32 v{vEND}, 16, v{vEND}
v_add_u32 v{vCUR}, v{vCUR}, v{vQ}
K2_ROUND:
@B5
v_sub_u32 v{t+1}, v{vEND}, v{vCUR}
v_mad_u32_u24 v{t}, v{vCUR}, 12, v{vRB}
""")
    for i in range(NR):
        a(f"v_cmp_lt_i32 s[{56+2*i}:{57+2*i}], {4*i}, v{t+1}")
    for i in range(NR):
        a(f"""
v_cndmask_b32 v{t+2+i}, v{vOOB}, v{t}, s[{56+2*i}:{57+2*i}]
buffer_load_dwordx3 {vr(RC+4*i,3)}, v{t+2+i}, s[32:35], s3 offen offset:{48*i}
""")
    a("s_mov_b64 exec, 1")
    for i in range(NR):
        a(f"s_bcnt1_i32_b64 s{11+i}, s[{56+2*i}:{57+2*i}]")
    for i in range(1, NR):
        a(f"s_add_u32 s{11+i}, s{11+i}, s{10+i}")
    a(f"""
v_mov_b32 v{t}, s{10+NR}
ds_add_rtn_u32 v{t}, v{vCN}, v{t}
s_mov_b64 exec, -1
""")
    for i in range(NR):
        a(f"v_mbcnt_lo_u32_b32 v{RC+4*i+3}, s{56+2*i}, 0\nv_mbcnt_hi_u32_b32 v{RC+4*i+3}, s{57+2*i}, v{RC+4*i+3}")
    a(f"""
s_waitcnt lgkmcnt(0)
v_readfirstlane_b32 s10, v{t}
v_mov_b32 v{t+1}, 0x3f80
s_movk_i32 s4, {CAP}
""")
    for i in range(1, NR):
        a(f"s_add_u32 s{10+i}, s{10+i}, s10")
    for i in range(NR):
        p = RC + 4*i + 3
        a(f"""
v_add_u32 v{p}, s{10+i}, v{p}
v_cmp_gt_u32 vcc, s4, v{p}
s_and_b64 s[{56+2*i}:{57+2*i}], vcc, s[{56+2*i}:{57+2*i}]
v_mul_u32_u24 v{t+2+i}, 48, v{p}
v_lshlrev_b32 v{p}, 2, v{p}
""")
    a(f"""
s_waitcnt vmcnt({NR})
ds_read_b64_tr_b16 {vr(B2,2)}, v{vXA}
ds_read_b64_tr_b16 {vr(B2+2,2)}, v{vXA} offset:256
ds_read_b64_tr_b16 {vr(B2+4,2)}, v{vXA} offset:1024
s_mov_b32 s4, 0x{NLOG2E:08x}
""")
    for k in range(4):
        a(f"v_lshlrev_b32 v{E+k}, 16, v{W3R+k}\nv_mul_f32 v{E+k}, s4, v{E+k}")
    a(f"""
v_cvt_pk_bf16_f32 v{E+4}, v{E}, v{E+1}
v_cvt_pk_bf16_f32 v{E+5}, v{E+2}, v{E+3}
v_lshlrev_b32 v{E+6}, 16, v{E+4}
v_and_b32 v{E+7}, 0xffff0000, v{E+4}
v_lshlrev_b32 v{E+8}, 16, v{E+5}
v_and_b32 v{E+9}, 0xffff0000, v{E+5}
v_sub_f32 v{E}, v{E}, v{E+6}
v_sub_f32 v{E+1}, v{E+1}, v{E+7}
v_sub_f32 v{E+2}, v{E+2}, v{E+8}
v_sub_f32 v{E+3}, v{E+3}, v{E+9}
v_cmp_eq_u32 vcc, 0, v{vH}
v_cvt_pk_bf16_f32 v{E+6}, v{E}, v{E+1}
v_cvt_pk_bf16_f32 v{E+7}, v{E+2}, v{E+3}
v_cndmask_b32 v{B2+6}, v{E+6}, v{E+4}, vcc
v_cndmask_b32 v{B2+7}, v{E+7}, v{E+5}, vcc
""")
    a(f"""
s_waitcnt lgkmcnt(0)
v_cndmask_b32 v{B2+4}, 0, v{B2+4}, vcc
v_cndmask_b32 v{B2+5}, 0, v{B2+5}, vcc
@B6
""")
    for i in range(NR):
        p = RC + 4*i + 3
        a(f"s_mov_b64 exec, s[{56+2*i}:{57+2*i}]")
        if i >= 2: a(f"s_cbranch_execz K2_RB_DONE")
        a(f"""
v_add_u32 v{vCUR}, 4, v{vCUR}
s_waitcnt vmcnt({NR-1-i})
v_and_b32 v{t}, {IDXM}, v{RC+4*i+2}
ds_write_b32 v{p}, v{t} offset:{IDX}
v_and_b32 v{RC+4*i+2}, 0xff, v{RC+4*i+2}
v_add_u32 v{RC+4*i+2}, v{RC+4*i+2}, v{t+2+i}
ds_write_b64 v{t+2+i}, {vr(RC+4*i,2)} offset:{RB+40}
ds_write_b16 v{RC+4*i+2}, v{t+1} offset:{RB}
""")
    IR = T1
    a(f"""
K2_RB_DONE:
s_mov_b64 exec, -1
v_cmp_lt_u32 vcc, v{vCUR}, v{vEND}
s_mov_b64 exec, vcc
ds_write_b32 v{vCN}, v{t+1} offset:4
s_mov_b64 exec, -1
@B7
@A4
s_waitcnt lgkmcnt(0)
s_barrier
@A5
""")
    for u in range(5):
        a(f"ds_read2_b32 {vr(IR+2*u,2)}, v{vIX} offset0:{32*u} offset1:{32*u+16}")
    a(f"""
ds_read_b64 {vr(IR+10,2)}, v{vCN}
ds_read_b128 {vr(AR,4)}, v{vRA0}
ds_read_b128 {vr(AR+4,4)}, v{vRA1}
""")
    def gissue(u, lg):
        a(f"""
s_add_u32 m0, s53, {0x800*(u&3)}
s_waitcnt lgkmcnt({lg})
v_add_u32 v{IR+2*u}, v{IR+2*u}, v{vGC0}
v_add_u32 v{IR+2*u+1}, v{IR+2*u+1}, v{vGC1}
buffer_load_dwordx4 v{IR+2*u}, s[32:35], 0 offen lds
buffer_load_dwordx4 v{IR+2*u+1}, s[32:35], 0 offen offset:1024 lds
""")
    gissue(0, 7)
    a(f"""
s_waitcnt lgkmcnt(0)
v_readfirstlane_b32 s48, v{IR+10}
v_readfirstlane_b32 s51, v{IR+11}
""")
    mfma(a, T0, AR, B2)
    mfma(a, T0, AR+4, B2+4, T0)
    a(f"""
s_min_u32 s48, s48, {CAP}
s_add_u32 s48, s48, 31
s_lshr_b32 s48, s48, 5
s_max_u32 s48, s48, 1
s_mov_b32 s49, 0
s_mov_b32 s50, 0
s_add_u32 s52, s53, 0x800
""")
    for u in range(1, GPRE): gissue(u, 0)
    a(f"""
@B8
s_waitcnt vmcnt({2*GPRE-2})
@B9
ds_read_b128 {vr(AP,4)}, v{vPA0}
ds_read_b128 {vr(AP+4,4)}, v{vPA1}
""")
    for u in range(GPRE, 4): gissue(u, 2)
    a("s_waitcnt lgkmcnt(0)")
    mfma(a, T0, AP, ID, T0)
    mfma(a, T0, AP+4, ID+4, T0)
    gissue(4, 0)
    a("s_nop 7\n@A6\nK2_LOOP:")
    if PROFM == "C":
        a("s_memtime s[70:71]\ns_mov_b32 m0, s49\ns_waitcnt lgkmcnt(0)\ns_movreld_b32 s78, s70")
    k2_half(a, 0, T0, T1, "K2A")
    a("s_cbranch_scc0 K2_DONE")
    k2_half(a, 1, T1, T0, "K2B")
    a("s_cbranch_scc1 K2_LOOP\nK2_DONE:\n@A7\ns_waitcnt lgkmcnt(0)")
    mfma(a, AGG, M, OH, AGG)
    mfma(a, AGG, M+4, OH+4, AGG)
    a(f"""
s_waitcnt vmcnt(0)
s_cmp_eq_u32 s51, 0
s_cbranch_scc1 K2_EPI
s_barrier
""")
    k2_addr_init(a)
    k2_zero(a)
    a(f"""
s_waitcnt lgkmcnt(0)
s_barrier
s_branch K2_ROUND
K2_EPI:
@A8
""")
    a(f"s_mov_b32 s6, 0x{NLN2:08x}")
    for r in range(8):
        a(f"v_lshlrev_b32 v{XF+2*r}, 16, v{UB+r}\nv_and_b32 v{XF+2*r+1}, 0xffff0000, v{UB+r}")
    for r in range(16):
        a(f"v_mul_f32 v{AGG+r}, s6, v{AGG+r}")
    for r in range(8):
        a(f"v_cvt_pk_bf16_f32 v{M+r}, v{AGG+2*r}, v{AGG+2*r+1}")
    a(f"""
v_add_u32 v232, s53, v{vWF}
ds_write_b128 v232, {vr(M,4)}
ds_write_b128 v232, {vr(M+4,4)} offset:1024
s_waitcnt lgkmcnt(0)
s_barrier
@A9
""")
    for s in range(8):
        a(f"ds_read_b128 {vr(T1+4*s,4)}, v{vWF} offset:{8192*(s>>1) + 1024*(s&1)}")
    a(f"""
v_lshlrev_b32 v232, 1, v{vH}
v_xor_b32 v232, v232, v252
v_lshlrev_b32 v232, 4, v232
v_lshl_or_b32 v232, v248, 6, v232
v_add_u32 v232, s53, v232
v_xor_b32 v233, 16, v232
v_lshrrev_b32 v228, 2, v1
v_bfe_u32 v229, v1, 4, 2
v_xor_b32 v229, v229, v253
v_lshlrev_b32 v229, 4, v229
v_lshl_or_b32 v229, v228, 6, v229
v_add_u32 v229, s53, v229
v_lshlrev_b32 v230, 4, v253
v_lshl_or_b32 v230, v228, 8, v230
v_add_u32 v230, s5, v230
v_add_u32 v231, 0x1000, v230
v_add_u32 v234, 16, v228
v_cmp_gt_u32 s[56:57], s46, v228
v_cmp_gt_u32 s[58:59], s46, v234
s_mov_b32 s6, 0x{NLOG2E:08x}
""")
    for s in range(8):
        a(f"s_waitcnt lgkmcnt({7-s})")
        mfma(a, XF, WU+4*s, T1+4*s, XF)
    a("s_nop 7\ns_nop 7")
    for r in range(16):
        a(f"v_mul_f32 v{E+r}, s6, v{XF+r}")
    for r in range(16):
        a(f"v_exp_f32 v{E+r}, v{E+r}")
    for r in range(8):
        a(f"v_pk_add_f32 {vr(E+2*r,2)}, {vr(E+2*r,2)}, 1.0 op_sel_hi:[1,0]")
    for r in range(16):
        a(f"v_rcp_f32 v{E+r}, v{E+r}")
    for r in range(8):
        a(f"v_pk_mul_f32 {vr(E+2*r,2)}, {vr(E+2*r,2)}, {vr(XF+2*r,2)}")
    for r in range(8):
        a(f"v_cvt_pk_bf16_f32 v{M+r}, v{E+2*r}, v{E+2*r+1}")
    a(f"""
ds_write_b128 v232, {vr(M,4)} offset:2048
ds_write_b128 v233, {vr(M+4,4)} offset:2048
s_waitcnt lgkmcnt(0)
ds_read_b128 {vr(AP,4)}, v229 offset:2048
ds_read_b128 {vr(AP+4,4)}, v229 offset:3072
s_mov_b64 exec, s[56:57]
s_waitcnt lgkmcnt(1)
buffer_store_dwordx4 {vr(AP,4)}, v230, s[36:39], 0 offen{K2SC}
s_mov_b64 exec, s[58:59]
s_waitcnt lgkmcnt(0)
buffer_store_dwordx4 {vr(AP+4,4)}, v231, s[36:39], 0 offen{K2SC}
@P1
K2_END:
s_endpgm
""")

def desc(name, vg):
    return f""".amdhsa_kernel {name}
  .amdhsa_next_free_vgpr {vg}
  .amdhsa_next_free_sgpr 96
  .amdhsa_accum_offset {vg}
  .amdhsa_group_segment_fixed_size 0
  .amdhsa_kernarg_size 72
  .amdhsa_user_sgpr_count 2
  .amdhsa_user_sgpr_kernarg_segment_ptr 1
  .amdhsa_system_sgpr_workgroup_id_x 1
.end_amdhsa_kernel
"""

def main(out):
    ref = open(f"cdna_kernels/{NAME}.s.ref").read().split("\n")
    hdr = [l for l in ref if l.startswith(";") and "@launch" not in l and "Override" not in l and "grid=ceil" not in l]
    k1n, k2n = "mpnn_prep_kernel", f"{NAME}_kernel"
    t = "\n".join(hdr) + "\n"
    t += f"; @launch kernel={k1n} grid=({K1_GRID},1,1) block=(640,1,1) lds={K1_LDS}\n"
    t += f"; @launch kernel={k2n} grid=(512,1,1) block=(256,1,1) lds={K2_LDS}\n"
    t += '.amdgcn_target "amdgcn-amd-amdhsa--gfx950"\n.text\n'
    for n, f in ((k1n, k1), (k2n, k2)):
        a = A(); f(a)
        t += f".globl {n}\n.p2align 8\n.type {n},@function\n{n}:\n" + a.text()
    t += '.section .rodata,"a"\n.p2align 6\n' + desc(k1n, 160) + ".p2align 6\n" + desc(k2n, 256)
    open(out, "w").write(t)

if __name__ == "__main__":
    main(sys.argv[1] if len(sys.argv) > 1 else f"cdna_kernels/{NAME}.s")
```

```python
import sys, struct, os
sys.path.insert(0, os.path.dirname(os.path.abspath(__file__)))
import haz
VERB = bool(os.environ.get('VERB'))

NAME = "gather_scatter__mpnn_edge_mlp__graph"
def f2u(x): return struct.unpack("<I", struct.pack("<f", x))[0]
NLOG2E = f2u(-1.4426950408889634)
NLN2 = f2u(-0.6931471805599453)

PW = 4096
PSTR = 0x280000
QW = PW + PSTR
UW = PW + 2 * PSTR
REC = 0x780000
TAB = 0x960000
WF = 0x980000
WS_SIZE = 0x990000
K1SC = os.environ.get("K1SC", " sc0 sc1")
K2SC = os.environ.get("K2SC", " sc0 sc1")
K1_LDS = 90112
ROTX = int(os.environ.get("ROTX", "16384"))
ROTW = int(os.environ.get("ROTW", "128"))
NCH = 64
CHE = 2500
K1_GRID = 256
CPF = int(os.environ.get("CPF", "3"))
DP = int(os.environ.get("DP", "5"))

class A:
    def __init__(s): s.l = []
    def __call__(s, t):
        for x in t.strip("\n").split("\n"):
            if x.strip().startswith("@"):
                x = x.strip()
                if x[1] in "SR": stamp(s, int(x[2:]), x[1] == "R")
                elif x[1] in "AB":
                    if PROFM == x[1]: stamp(s, int(x[2:]))
                else: prof_out(s, int(x[2:]), 32)
                continue
            s.l.append("    " + x.strip() if not x.strip().endswith(":") else x.strip())
    def text(s): return "\n".join(haz.pad(s.l, VERB)) + "\n"

def srd(a, d, b, n):
    a(f"s_mov_b32 s{d}, s{b}\ns_mov_b32 s{d+1}, s{b+1}\ns_mov_b32 s{d+2}, {n}\ns_mov_b32 s{d+3}, 0x00020000")

PROF = bool(os.environ.get('PROF'))
PROFB = 0x1000000
PROFM = os.environ.get('PROF', '')
def stamp(a, i, real=False):
    if PROF:
        a(f"s_{'memrealtime' if real else 'memtime'} s[{72+2*i}:{73+2*i}]")
def prof_out(a, kid, wsr):
    if not PROF: return
    if kid == 0: stamp(a, 9)
    a("s_waitcnt vmcnt(0)")
    stamp(a, 10); stamp(a, 11, True)
    a(f"""
s_mov_b64 exec, 1
s_waitcnt lgkmcnt(0)
v_lshrrev_b32 v1, 6, v0
v_lshlrev_b32 v1, 6, v1
s_lshl_b32 s3, s2, 10
s_add_u32 s3, s3, {PROFB + kid*0x100000}
s_mov_b32 s{wsr+2}, 0x2000000
""")
    for j in range(3):
        for u in range(4):
            a(f"v_mov_b32 v{4+u}, s{72+2*(4*j+u)}")
        a(f"buffer_store_dwordx4 v[4:7], v1, s[{wsr}:{wsr+3}], s3 offen offset:{16*j}\ns_nop 1")
    a("s_getreg_b32 s4, hwreg(HW_REG_HW_ID)\ns_getreg_b32 s5, hwreg(HW_REG_XCC_ID)\nv_mov_b32 v4, s4\nv_mov_b32 v5, s5\nv_mov_b32 v6, s48\nv_mov_b32 v7, 1")
    a(f"buffer_store_dwordx4 v[4:7], v1, s[{wsr}:{wsr+3}], s3 offen offset:48")

def vr(b, n): return f"v[{b}:{b+n-1}]"

def k1(a):
    XA, XB, WA, C0, C1, PK, ST = 64, 96, 32, 128, 144, 16, 24
    a(f"""
s_cmp_ge_u32 s2, {K1_GRID}
s_cbranch_scc1 K1_END
@R0
@S1
s_load_dwordx16 s[8:23], s[0:1], 0
s_load_dwordx2 s[24:25], s[0:1], 64
""")
    if CPF & 1:
        a(f"""
s_getpc_b64 s[4:5]
K1_PC:
v_subrev_u32 v1, 512, v0
v_lshlrev_b32 v1, 7, v1
s_mov_b32 s6, K2_END-K1_PC
v_cmp_gt_u32 vcc, s6, v1
s_cbranch_vccz K1_PF2
s_mov_b64 exec, vcc
global_load_dword v70, v1, s[4:5]
s_mov_b64 exec, -1
K1_PF2:
""")
    a(f"""
s_cmp_lt_u32 s2, {NCH}
s_cbranch_scc1 K1_SORT
""")
    a(f"""
v_lshrrev_b32 v2, 6, v0
v_and_b32 v1, 63, v0
s_lshr_b32 s44, s2, 6
v_readfirstlane_b32 s27, v2
s_and_b32 s3, s2, 63
s_cmp_ge_u32 s27, 8
s_cbranch_scc1 {"K1_PF" if CPF & 1 else "K1_END"}
v_lshrrev_b32 v2, 4, v1
v_and_b32 v3, 15, v1
v_lshlrev_b32 v4, 2, v2
v_xor_b32 v4, v3, v4
v_lshlrev_b32 v4, 4, v4
v_lshl_or_b32 v4, v2, 8, v4
s_lshl_b32 s4, s27, 2
v_add_u32 v5, s4, v2
v_and_b32 v6, 15, v5
v_xor_b32 v6, v3, v6
v_lshlrev_b32 v6, 4, v6
v_lshl_or_b32 v6, v5, 8, v6
s_mul_i32 s5, s3, 40960
s_lshl_b32 s6, s27, 12
s_cmp_eq_u32 s44, 2
s_cselect_b32 s49, 0x8000, 0
s_mov_b32 s47, 3
s_movk_i32 s48, 1024
s_cmp_lg_u32 s3, 63
s_cbranch_scc1 K1_G1
s_cmp_lg_u32 s44, 3
s_cbranch_scc1 K1_END
s_mov_b32 s47, 2
s_movk_i32 s48, 0x800
s_mov_b32 s49, 0x8000
K1_G1:
s_add_u32 s49, s49, s6
s_and_b32 s26, s27, 3
s_mov_b32 s38, 65536
s_mov_b32 s39, 0x00020000
s_mov_b32 s30, 2560000
s_mov_b32 s31, 0x00020000
s_lshl_b32 s7, s27, 10
s_mul_i32 s4, s44, {ROTX}
""")
    for b in range(5):
        a(f"""
s_add_u32 s{52+b}, s4, {8192*b}
s_cmp_ge_u32 s{52+b}, 40960
s_cselect_b32 s57, 40960, 0
s_sub_u32 s{52+b}, s{52+b}, s57
s_cmp_ge_u32 s{52+b}, 40960
s_cselect_b32 s57, 40960, 0
s_sub_u32 s{52+b}, s{52+b}, s57
s_add_u32 s{52+b}, s{52+b}, s5
""")
    a(f"s_mul_i32 s4, s3, {ROTW}")
    for i in range(4):
        a(f"s_add_u32 s{60+i}, s4, {1024*i}\ns_and_b32 s{60+i}, s{60+i}, 0xc00")
    a(f"""
s_add_u32 m0, s7, 32768
s_cmp_eq_u32 s44, 3
s_waitcnt lgkmcnt(0)
@S2
s_mov_b32 s28, s8
s_mov_b32 s29, s9
buffer_load_dwordx4 v6, s[28:31], s52 offen lds
s_cselect_b32 s36, s18, s16
s_cselect_b32 s37, s19, s17
s_add_u32 m0, s7, {32768 + 8192}
s_nop 0
buffer_load_dwordx4 v6, s[28:31], s53 offen lds
""")
    for i in range(4):
        a(f"""
s_add_u32 m0, s6, s{60+i}
s_add_u32 s4, s49, s{60+i}
buffer_load_dwordx4 v4, s[36:39], s4 offen lds
""")
    for b in range(2, 5):
        a(f"""
s_add_u32 m0, s7, {32768 + 8192*b}
s_nop 0
buffer_load_dwordx4 v6, s[28:31], s{52+b} offen lds
""")
    srd(a, 32, 24, WS_SIZE)
    a(f"""
v_and_b32 v8, 1, v1
v_lshlrev_b32 v8, 4, v8
v_bfe_u32 v9, v1, 1, 1
v_lshl_or_b32 v8, v9, 2, v8
v_bfe_u32 v9, v1, 4, 1
v_lshl_or_b32 v8, v9, 3, v8
v_bfe_u32 v10, v1, 2, 2
v_lshrrev_b32 v11, 5, v1
v_lshlrev_b32 v12, s47, v11
v_add_u32 v12, v12, v10
v_lshrrev_b32 v9, 3, v8
s_lshl_b32 s4, s26, 2
v_add_u32 v9, s4, v9
v_lshlrev_b32 v10, 2, v10
v_xor_b32 v9, v9, v10
v_lshlrev_b32 v9, 4, v9
v_lshl_or_b32 v9, v12, 8, v9
v_and_b32 v8, 4, v8
v_lshl_or_b32 v8, v8, 1, v9
v_add_u32 v9, s48, v8
v_and_b32 v12, 31, v1
v_xor_b32 v13, v11, v3
v_lshlrev_b32 v13, 4, v13
v_lshl_or_b32 v13, v12, 8, v13
s_lshr_b32 s45, s27, 2
s_lshl_b32 s4, s45, 13
s_add_u32 s4, s4, 32768
v_add_u32 v13, s4, v13
""")
    for s in range(8):
        a(f"v_xor_b32 v{ST+s}, {32*s}, v13")
    a(f"""
s_lshl_b32 s4, s27, 11
s_add_u32 s4, s4, 73728
v_bfe_u32 v14, v1, 2, 2
v_lshlrev_b32 v15, 1, v11
v_xor_b32 v14, v14, v15
v_lshlrev_b32 v14, 4, v14
v_lshl_or_b32 v14, v12, 6, v14
v_add_u32 v14, s4, v14
v_xor_b32 v15, 16, v14
v_and_b32 v2, 3, v2
v_and_b32 v3, 3, v1
v_xor_b32 v2, v2, v3
v_lshlrev_b32 v2, 4, v2
v_lshrrev_b32 v5, 2, v1
v_lshl_or_b32 v2, v5, 6, v2
v_add_u32 v2, s4, v2
v_lshlrev_b32 v3, 4, v3
v_lshl_or_b32 v3, v5, 8, v3
v_add_u32 v7, 0x1000, v3
s_lshl_b32 s4, s26, 6
s_mul_i32 s6, s44, {PSTR}
s_add_u32 s4, s4, s6
s_add_u32 s4, s4, {(PW - PSTR) & 0xffffffff}
s_cmp_eq_u32 s45, 0
s_cselect_b32 s52, s52, s53
s_cselect_b32 s53, s54, s55
s_add_u32 s52, s52, s4
s_add_u32 s53, s53, s4
s_add_u32 s54, s56, s4
s_cmp_eq_u32 s44, 3
s_cselect_b32 s6, 1.0, 0x{NLOG2E:08x}
s_waitcnt vmcnt(3)
@S3
s_barrier
@S4
""")
    def xrd(X, blk, s): return f"ds_read_b128 {vr(X+4*s,4)}, v{ST+s} offset:{16384*blk}"
    def post(C):
        l = [f"v_mul_f32 v{C+r}, s6, v{C+r}" for r in range(16)]
        l += [f"v_cvt_pk_bf16_f32 v{PK+r}, v{C+2*r}, v{C+2*r+1}" for r in range(8)]
        l += [f"ds_write_b128 v14, {vr(PK,4)}", f"ds_write_b128 v15, {vr(PK+4,4)}",
              f"ds_read_b128 {vr(C,4)}, v2", f"ds_read_b128 {vr(C+4,4)}, v2 offset:1024"]
        return l
    def store(C, so):
        a(f"""
s_waitcnt lgkmcnt(1)
buffer_store_dwordx4 {vr(C,4)}, v3, s[32:35], s{so} offen{K1SC}
s_waitcnt lgkmcnt(0)
buffer_store_dwordx4 {vr(C+4,4)}, v7, s[32:35], s{so} offen{K1SC}
""")
    def rd3(s):
        a(f"ds_read_b64_tr_b16 v[{WA+4*s}:{WA+1+4*s}], v8 offset:{4096*s}")
        a(f"ds_read_b64_tr_b16 v[{WA+2+4*s}:{WA+3+4*s}], v9 offset:{4096*s}")
        a(xrd(XA, 0, s))
    for s in range(4): rd3(s)
    for s in range(8):
        if s < 4: rd3(s + 4)
        a(f"s_waitcnt lgkmcnt({12 if s < 4 else 3*(7-s)})")
        mfma(a, C0, WA+4*s, XA+4*s, None if s == 0 else C0)
    a(f"""
s_cmp_eq_u32 s3, 63
s_cbranch_scc1 K1_PREP
s_waitcnt vmcnt(0)
@S5
s_barrier
@S6
""")
    for s in range(8): a(xrd(XB, 1, s))
    fill = post(C0)
    pre = fill[:8]; fill = fill[8:] + [xrd(XA, 2, s) for s in range(8)]
    for x in pre: a(x)
    cuts = [4, 8, 12, 16, 20, 24, 28, 28]
    for s in range(8):
        if s < 4: a(f"s_waitcnt lgkmcnt({7-s if s < 3 else 0})")
        mfma(a, C1, WA+4*s, XB+4*s, None if s == 0 else C1)
        for x in fill[(cuts[s-1] if s else 0):cuts[s]]: a(x)
    a("@S7")
    store(C0, 52)
    a("s_cmp_eq_u32 s45, 0\ns_cbranch_scc0 K1_G2")
    fill = post(C1)
    CX = XB
    cuts = [0, 4, 9, 14, 19, 24, 28, 28]
    for s in range(8):
        mfma(a, CX, WA+4*s, XA+4*s, None if s == 0 else CX)
        for x in fill[(cuts[s-1] if s else 0):cuts[s]]: a(x)
    store(C1, 53)
    for x in post(CX): a(x)
    store(CX, 54)
    a("@P0\ns_endpgm\nK1_G2:\ns_nop 5")
    for x in post(C1): a(x)
    store(C1, 53)
    a(f"""
@P0
s_endpgm
K1_PREP:
s_waitcnt vmcnt(0)
s_cmp_ge_u32 s27, 4
s_cbranch_scc1 K1_END
s_lshl_b32 s6, s26, 13
s_add_u32 s4, s6, {WF}
v_lshlrev_b32 v2, 4, v1
v_add_u32 v2, s4, v2
v_add_u32 v3, 0x1000, v2
s_waitcnt lgkmcnt(0)
""")
    for s in range(8):
        a(f"buffer_store_dwordx4 {vr(WA+4*s,4)}, v{2+(s>>2)}, s[32:35], 0 offen offset:{1024*(s&3)}{K1SC}")
    a("s_endpgm")
    IMG = 8192
    a(f"""
K1_SORT:
s_mul_i32 s3, s2, {CHE*4}
v_lshlrev_b32 v28, 4, v0
v_add_u32 v1, s3, v28
v_lshlrev_b32 v2, 1, v1
s_mov_b32 s30, 640000
s_mov_b32 s31, 0x00020000
s_mov_b32 s38, 640000
s_mov_b32 s39, 0x00020000
s_mov_b32 s42, 1280000
s_mov_b32 s43, 0x00020000
s_movk_i32 s4, 625
v_cmp_gt_u32 s[26:27], s4, v0
v_lshlrev_b32 v3, 2, v0
v_mov_b32 v30, 0
v_mov_b32 v31, 1
s_waitcnt lgkmcnt(0)
@S2
s_mov_b32 s28, s14
s_mov_b32 s29, s15
buffer_load_dwordx4 v[4:7], v1, s[28:31], 0 offen
s_mov_b32 s36, s12
s_mov_b32 s37, s13
s_mov_b32 s40, s10
s_mov_b32 s41, s11
ds_write_b32 v3, v30
s_waitcnt lgkmcnt(0)
s_barrier
buffer_load_dwordx4 v[8:11], v1, s[36:39], 0 offen
buffer_load_dwordx4 v[12:15], v2, s[40:43], 0 offen
buffer_load_dwordx4 v[24:27], v2, s[40:43], 0 offen offset:16
s_movk_i32 s5, 3355
s_mov_b32 s6, 1280180
v_and_b32 v3, 63, v0
v_lshlrev_b32 v3, 5, v3
""")
    srd(a, 32, 24, WS_SIZE)
    a("s_mov_b64 exec, s[26:27]\ns_waitcnt vmcnt(3)\n@S3")
    for i in range(4):
        a(f"""
v_mul_u32_u24 v{4+i}, s5, v{4+i}
v_lshrrev_b32 v{32+i}, 16, v{4+i}
v_lshlrev_b32 v{32+i}, 2, v{32+i}
ds_add_rtn_u32 v{36+i}, v{32+i}, v31
""")
    for i in range(4):
        a(f"""
v_and_b32 v{4+i}, 0xffff, v{4+i}
v_mul_hi_u32_u24 v{4+i}, s6, v{4+i}
v_lshlrev_b32 v{4+i}, 1, v{4+i}
""")
    a(f"""
v_cmp_gt_u32 vcc, 64, v0
s_lshl_b32 s7, s2, 11
s_add_u32 s7, s7, {TAB}
s_waitcnt lgkmcnt(0)
@S4
s_barrier
s_cbranch_vccz K1_S2
ds_read_b128 v[48:51], v3
ds_read_b128 v[52:55], v3 offset:16
s_waitcnt lgkmcnt(0)
""")
    for j in range(1, 8):
        a(f"v_add_u32 v{48+j}, v{48+j}, v{47+j}")
    a(f"""
v_mov_b32 v56, v55
s_nop 1
v_add_u32_dpp v56, v56, v56 row_shr:1 row_mask:0xf bank_mask:0xf bound_ctrl:0
s_nop 1
v_add_u32_dpp v56, v56, v56 row_shr:2 row_mask:0xf bank_mask:0xf bound_ctrl:0
s_nop 1
v_add_u32_dpp v56, v56, v56 row_shr:4 row_mask:0xf bank_mask:0xf bound_ctrl:0
s_nop 1
v_add_u32_dpp v56, v56, v56 row_shr:8 row_mask:0xf bank_mask:0xf bound_ctrl:0
s_nop 1
v_add_u32_dpp v56, v56, v56 row_bcast:15 row_mask:0xa bank_mask:0xf
s_nop 1
v_add_u32_dpp v56, v56, v56 row_bcast:31 row_mask:0xc bank_mask:0xf
v_sub_u32 v56, v56, v55
""")
    for j in range(1, 8):
        a(f"v_add_u32 v{56+j}, v56, v{47+j}")
    a(f"""
v_add_u32 v64, v56, v55
ds_write_b128 v3, v[56:59] offset:4096
ds_write_b128 v3, v[60:63] offset:4112
""")
    for j in range(8):
        a(f"v_lshl_or_b32 v{48+j}, v{57+j}, 16, v{56+j}")
    a(f"""
s_waitcnt lgkmcnt(0)
K1_S2:
s_barrier
@S5
ds_read_b32 v40, v32 offset:4096
ds_read_b32 v41, v33 offset:4096
ds_read_b32 v42, v34 offset:4096
ds_read_b32 v43, v35 offset:4096
s_mul_i32 s3, s2, {CHE*12}
s_add_u32 s3, s3, {REC}
s_movk_i32 s4, {IMG}
s_waitcnt vmcnt(2)
@S6
""")
    for i in range(4):
        a(f"v_lshl_or_b32 v{4+i}, v{8+i}, 8, v{4+i}")
    er = [12, 14, 24, 26]
    for i in range(4):
        a(f"""
s_waitcnt lgkmcnt({3+i})
v_add_u32 v{40+i}, v{40+i}, v{36+i}
v_mad_u32_u24 v{40+i}, v{40+i}, 12, s4
""")
        if i in (0, 2): a(f"s_waitcnt vmcnt({1 - i//2})")
        a(f"""
ds_write2_b32 v{40+i}, v{er[i]}, v{er[i]+1} offset1:1
ds_write_b32 v{40+i}, v{4+i} offset:8
""")
    a(f"""
s_mov_b64 exec, -1
s_cbranch_vccz K1_S3
buffer_store_dwordx4 v[48:51], v3, s[32:35], s7 offen{K1SC}
buffer_store_dwordx4 v[52:55], v3, s[32:35], s7 offen offset:16{K1SC}
K1_S3:
s_movk_i32 s4, {1875 - 1280}
v_cmp_gt_u32 vcc, s4, v0
s_add_u32 s5, s3, 10240
s_add_u32 s6, s3, 20480
s_waitcnt lgkmcnt(0)
@S7
s_barrier
@S8
ds_read_b128 v[4:7], v28 offset:{IMG}
ds_read_b128 v[8:11], v28 offset:{IMG+10240}
ds_read_b128 v[12:15], v28 offset:{IMG+20480}
s_waitcnt lgkmcnt(2)
buffer_store_dwordx4 v[4:7], v28, s[32:35], s3 offen{K1SC}
s_waitcnt lgkmcnt(1)
buffer_store_dwordx4 v[8:11], v28, s[32:35], s5 offen{K1SC}
s_mov_b64 exec, vcc
s_waitcnt lgkmcnt(0)
buffer_store_dwordx4 v[12:15], v28, s[32:35], s6 offen{K1SC}
@P0
K1_END:
s_endpgm
""")
    a("K1_PF:\ns_waitcnt vmcnt(0)\ns_endpgm")

RING = 0; RB = 32768; IDX = RB + 20480; NZ = 6; XT = RB + 24576; CNT = XT + 8192; K2_LDS = CNT + 16
CAP = 416
T0, T1, E, AGG, M, AP, AR, OH, ID, B2, XF, WU, RC = 16, 32, 48, 64, 80, 88, 96, 104, 112, 120, 128, 160, 224
vPA0, vPA1, vRA0, vRA1, vTR, vIX, vGC0, vGC1, vCUR, vEND, vWF, vH, vG0, vG1 = 2, 3, 4, 5, 6, 7, 8, 9, 10, 11, 12, 13, 14, 15
W3R = 244
vN, vRB, vZ, vCN, vQ2, vQ, vOOB, vXA = 248, 249, 250, 251, 252, 253, 254, 255
NR = 5
IDXM = os.environ.get("IDXM", "0xffffff00")
GPRE = int(os.environ.get("GPRE", "2"))
PF = int(os.environ.get("PF", "0"))

def mfma(a, d, x, y, c=None):
    cc = "0" if c is None else vr(c, 16)
    a(f"v_mfma_f32_32x32x16_bf16 {vr(d,16)}, {vr(x,4)}, {vr(y,4)}, {cc}")

def k2_half(a, par, Tc, Tn, name):
    np_ = par ^ 1
    a(f"""
s_cmp_lg_u32 s50, 0
s_cbranch_scc1 {name}_W2
s_waitcnt vmcnt({2*DP-4}) lgkmcnt(0)
s_branch {name}_W3
{name}_W2:
s_waitcnt vmcnt({2*DP+6}) lgkmcnt(0)
{name}_W3:
""")
    if par == 1:
        a(f"""
v_xor_b32 v{vPA0}, 0x1000, v{vPA0}
v_xor_b32 v{vPA1}, 0x1000, v{vPA1}
""")
    ro = 1536 * (par + 1)
    a(f"""
ds_read_b128 {vr(AP,4)}, v{vPA0} offset:{2048*np_}
ds_read_b128 {vr(AP+4,4)}, v{vPA1} offset:{2048*np_}
ds_read_b128 {vr(AR,4)}, v{vRA0} offset:{ro}
ds_read_b128 {vr(AR+4,4)}, v{vRA1} offset:{ro}
ds_read2_b32 v[{vG0}:{vG1}], v{vIX} offset0:{32*(DP+par)} offset1:{32*(DP+par)+16}
s_setprio 1
""")
    for r in range(16):
        if r == 0: mfma(a, AGG, M, OH, AGG)
        if r == 3: mfma(a, AGG, M+4, OH+4, AGG)
        a(f"v_exp_f32 v{E+r}, v{Tc+r}")
    a("s_setprio 0")
    for r in range(8):
        a(f"v_pk_add_f32 {vr(E+2*r,2)}, {vr(E+2*r,2)}, 1.0 op_sel_hi:[1,0]")
    a(f"""
s_waitcnt lgkmcnt(0)
v_add_u32 v{vG0}, v{vG0}, v{vGC0}
v_add_u32 v{vG1}, v{vG1}, v{vGC1}
s_mov_b32 m0, s52
s_add_u32 s52, s52, 0x800
buffer_load_dwordx4 v{vG0}, s[32:35], 0 offen lds
buffer_load_dwordx4 v{vG1}, s[32:35], 0 offen offset:1024 lds
s_and_b32 s52, s52, 0x1fff
s_or_b32 s52, s52, s53
""")
    to = 1536 * par
    for m in range(2):
        a(f"ds_read_b64_tr_b16 {vr(OH+4*m,2)}, v{vTR} offset:{to + 48*16*m}")
        a(f"ds_read_b64_tr_b16 {vr(OH+4*m+2,2)}, v{vTR} offset:{to + 48*16*m + 48*8}")
    if par == 0:
        a(f"""
s_cmp_lg_u32 s50, 0
s_cbranch_scc1 {name}_NW
s_add_u32 s4, s49, {DP+1}
s_cmp_lt_u32 s4, s48
s_cbranch_scc1 {name}_NW
s_mov_b32 s50, 1
""")
        for s in range(8):
            so = "s54" if s < 4 else "s55"
            a(f"buffer_load_dwordx4 {vr(WU+4*s,4)}, v{vWF}, s[32:35], {so} offen offset:{1024*(s&3)}")
        a(f"buffer_load_dwordx4 {vr(XF+16,4)}, v{XF+24}, s[32:35], s9 offen")
        a(f"buffer_load_dwordx4 {vr(XF+20,4)}, v{XF+24}, s[32:35], s9 offen offset:16")
        a(f"{name}_NW:")
    a("s_setprio 1")
    for r in range(16):
        if r == 0: mfma(a, Tn, AP, ID)
        if r == 3: mfma(a, Tn, AP+4, ID+4, Tn)
        if r == 6: mfma(a, Tn, AR, B2, Tn)
        if r == 9: mfma(a, Tn, AR+4, B2+4, Tn)
        a(f"v_rcp_f32 v{E+r}, v{E+r}")
    a("s_setprio 0")
    if par == 1:
        a(f"""
v_add_u32 v{vRA0}, 0xc00, v{vRA0}
v_add_u32 v{vRA1}, 0xc00, v{vRA1}
v_add_u32 v{vTR}, 0xc00, v{vTR}
v_add_u32 v{vIX}, 0x100, v{vIX}
""")
    for r in range(8):
        a(f"v_pk_mul_f32 {vr(E+2*r,2)}, {vr(E+2*r,2)}, {vr(Tc+2*r,2)}")
    for r in range(8):
        a(f"v_cvt_pk_bf16_f32 v{M+r}, v{E+2*r}, v{E+2*r+1}")
    a("s_add_u32 s49, s49, 1\ns_cmp_lt_u32 s49, s48")

def k2_addr_init(a):
    t = AP
    a(f"""
v_mul_u32_u24 v{vRA1}, 48, v{vN}
v_lshl_add_u32 v{vRA0}, v{vH}, 4, v{vRA1}
v_add_u32 v{vRA0}, {RB}, v{vRA0}
v_add_u32 v{vRA1}, {RB+32}, v{vRA1}
v_lshl_add_u32 v{vTR}, v{vH}, 2, v{vQ2}
v_mul_u32_u24 v{vTR}, 48, v{vTR}
v_bfe_u32 v{t}, v1, 4, 1
v_lshl_or_b32 v{t}, v{t}, 2, v{vQ}
v_lshl_add_u32 v{vTR}, v{t}, 3, v{vTR}
v_add_u32 v{vTR}, {RB}, v{vTR}
v_and_b32 v{vIX}, 60, v1
v_add_u32 v{vIX}, {IDX}, v{vIX}
v_xor_b32 v{vPA0}, v{vQ2}, v{vH}
v_lshlrev_b32 v{vPA0}, 4, v{vPA0}
v_lshl_or_b32 v{vPA0}, v{vN}, 6, v{vPA0}
v_add_u32 v{vPA0}, s53, v{vPA0}
v_xor_b32 v{vPA1}, 32, v{vPA0}
""")
    for r in range(8):
        a(f"v_mov_b32 v{M+r}, 0\nv_mov_b32 v{OH+r}, 0")

def k2_zero(a):
    for j in range(NZ):
        a(f"ds_write_b128 v{vZ}, {vr(M,4)} offset:{RB + 4096*j}")
    a(f"ds_write_b64 v{vCN}, {vr(M,2)}")

def k2(a):
    t = AR
    UB = XF + 16
    a(f"""
s_cmpk_ge_u32 s2, 512
s_cbranch_scc1 K2_END
@R0
@S1
s_load_dwordx2 s[24:25], s[0:1], 64
s_load_dwordx2 s[16:17], s[0:1], 32
s_load_dwordx2 s[20:21], s[0:1], 48
""")
    if CPF & 2:
        a(f"""
s_getpc_b64 s[4:5]
K2_PC:
v_lshlrev_b32 v1, 7, v0
s_mov_b32 s6, K2_END-K2_PC
v_cmp_gt_u32 vcc, s6, v1
s_cbranch_vccz K2_PF2
s_mov_b64 exec, vcc
global_load_dword v{RC}, v1, s[4:5]
s_mov_b64 exec, -1
K2_PF2:
""")
    a(f"""
v_lshrrev_b32 v{vH}, 6, v0
v_and_b32 v1, 63, v0
s_and_b32 s44, s2, 7
v_readfirstlane_b32 s47, v{vH}
s_lshl_b32 s44, s44, 6
s_lshr_b32 s43, s2, 3
s_add_u32 s44, s44, s43
v_lshrrev_b32 v{t}, 2, v0
v_lshlrev_b32 v{t+1}, 11, v{t}
s_lshl_b32 s3, s44, 2
s_add_u32 s3, s3, {TAB}
s_mov_b32 s34, {WS_SIZE}
s_mov_b32 s35, 0x00020000
s_mul_i32 s45, s44, 1280169
s_add_u32 s46, s45, {1280169+65535}
s_add_u32 s45, s45, 65535
s_lshr_b32 s45, s45, 16
s_lshr_b32 s46, s46, 16
s_min_u32 s46, s46, 10000
s_sub_u32 s46, s46, s45
s_movk_i32 s4, {CHE*12}
v_mul_u32_u24 v{vRB}, s4, v{t}
v_bfrev_b32 v{vOOB}, 2
v_lshrrev_b32 v{vH}, 5, v1
v_bfe_u32 v{vQ2}, v1, 2, 2
v_and_b32 v{vQ}, 3, v1
v_and_b32 v{vN}, 31, v1
s_lshl_b32 s5, s45, 8
s_lshl_b32 s4, s47, 6
s_add_u32 s5, s5, s4
v_lshrrev_b32 v{t+2}, 2, v1
v_lshlrev_b32 v{t+5}, 4, v{vQ}
v_lshl_or_b32 v{t+5}, v{t+2}, 8, v{t+5}
v_lshlrev_b32 v{t+6}, 5, v{vH}
v_lshl_or_b32 v{XF+24}, v{vN}, 8, v{t+6}
s_add_u32 s6, s5, {QW}
s_add_u32 s8, s5, {QW + 4096 - 1024}
s_add_u32 s9, s5, {UW}
s_lshl_b32 s7, s47, 11
s_add_u32 s7, s7, {XT}
s_mov_b32 m0, s7
s_add_u32 s4, s4, 65536
v_lshl_add_u32 v{t+7}, v{vN}, 1, s4
s_lshl_b32 s53, s47, 13
v_lshlrev_b32 v{vZ}, 4, v0
v_mov_b32 v{vCN}, {CNT}
s_mov_b32 s42, 66560
s_mov_b32 s43, 0x00020000
""")
    k2_addr_init(a)
    a(f"""
s_waitcnt lgkmcnt(0)
@S2
s_mov_b32 s32, s24
s_mov_b32 s33, s25
buffer_load_dword v{vEND}, v{t+1}, s[32:35], s3 offen
s_mov_b32 s40, s16
s_mov_b32 s41, s17
buffer_load_dwordx4 v{t+5}, s[32:35], s6 offen lds
s_mov_b64 exec, 0xffff
buffer_load_dwordx4 v{t+5}, s[32:35], s8 offen offset:1024 lds
s_mov_b64 exec, -1
""")
    for k in range(4):
        a(f"buffer_load_ushort v{W3R+k}, v{t+7}, s[40:43], 0 offen offset:{256*k}")
    k2_zero(a)
    srd(a, 36, 20, 2560000)
    a(f"""
v_lshlrev_b32 v{vWF}, 4, v1
s_add_u32 s54, s53, {WF}
s_add_u32 s55, s54, 0x1000
v_bfe_u32 v{t+2}, v1, 4, 2
v_xor_b32 v{vGC0}, v{vQ}, v{t+2}
s_lshl_b32 s4, s47, 6
s_add_u32 s4, s4, {PW}
v_lshl_add_u32 v{vGC0}, v{vGC0}, 4, s4
v_add_u32 v{vGC1}, 0xfffffc00, v{vGC0}
v_lshl_add_u32 v{vXA}, v{vH}, 3, v{vQ2}
v_and_b32 v{t+2}, 1, v{t+2}
v_lshl_or_b32 v{t+2}, v{t+2}, 2, v{vQ}
v_lshlrev_b32 v{t+2}, 3, v{t+2}
v_lshl_or_b32 v{vXA}, v{vXA}, 6, v{t+2}
v_add_u32 v{vXA}, s7, v{vXA}
v_lshrrev_b32 v{t}, 1, v{vN}
v_lshlrev_b32 v{t+1}, 2, v{vH}
v_sub_u32 v{t}, v{t}, v{t+1}
v_and_b32 v{t+1}, 1, v1
v_lshlrev_b32 v{t+1}, 4, v{t+1}
v_mov_b32 v{t+2}, 0x3f80
v_lshlrev_b32 v{t+1}, v{t+1}, v{t+2}
""")
    for j in range(2):
        for u in range(4):
            a(f"v_cmp_eq_u32 vcc, {8*j+u}, v{t}")
            a(f"v_mov_b32 v{AGG+8*j+2*u}, 0\nv_mov_b32 v{AGG+8*j+2*u+1}, 0")
            a(f"v_cndmask_b32 v{ID+4*j+u}, 0, v{t+1}, vcc")
    a(f"""
s_mov_b32 s3, {REC}
@B3
s_waitcnt lgkmcnt(0)
s_barrier
@B4
s_waitcnt vmcnt(6)
@A3
v_and_b32 v{vCUR}, 0xffff, v{vEND}
v_lshrrev_b32 v{vEND}, 16, v{vEND}
v_add_u32 v{vCUR}, v{vCUR}, v{vQ}
K2_ROUND:
@B5
v_sub_u32 v{t+1}, v{vEND}, v{vCUR}
v_mad_u32_u24 v{t}, v{vCUR}, 12, v{vRB}
""")
    for i in range(NR):
        a(f"v_cmp_lt_i32 s[{56+2*i}:{57+2*i}], {4*i}, v{t+1}")
    for i in range(NR):
        a(f"""
v_cndmask_b32 v{t+2+i}, v{vOOB}, v{t}, s[{56+2*i}:{57+2*i}]
buffer_load_dwordx3 {vr(RC+4*i,3)}, v{t+2+i}, s[32:35], s3 offen offset:{48*i}
""")
    a("s_mov_b64 exec, 1")
    for i in range(NR):
        a(f"s_bcnt1_i32_b64 s{11+i}, s[{56+2*i}:{57+2*i}]")
    for i in range(1, NR):
        a(f"s_add_u32 s{11+i}, s{11+i}, s{10+i}")
    a(f"""
v_mov_b32 v{t}, s{10+NR}
ds_add_rtn_u32 v{t}, v{vCN}, v{t}
s_mov_b64 exec, -1
""")
    for i in range(NR):
        a(f"v_mbcnt_lo_u32_b32 v{RC+4*i+3}, s{56+2*i}, 0\nv_mbcnt_hi_u32_b32 v{RC+4*i+3}, s{57+2*i}, v{RC+4*i+3}")
    a(f"""
s_waitcnt lgkmcnt(0)
v_readfirstlane_b32 s10, v{t}
v_mov_b32 v{t+1}, 0x3f80
s_movk_i32 s4, {CAP}
""")
    for i in range(1, NR):
        a(f"s_add_u32 s{10+i}, s{10+i}, s10")
    for i in range(NR):
        p = RC + 4*i + 3
        a(f"""
v_add_u32 v{p}, s{10+i}, v{p}
v_cmp_gt_u32 vcc, s4, v{p}
s_and_b64 s[{56+2*i}:{57+2*i}], vcc, s[{56+2*i}:{57+2*i}]
v_mul_u32_u24 v{t+2+i}, 48, v{p}
v_lshlrev_b32 v{p}, 2, v{p}
""")
    a(f"""
s_waitcnt vmcnt({NR})
ds_read_b64_tr_b16 {vr(B2,2)}, v{vXA}
ds_read_b64_tr_b16 {vr(B2+2,2)}, v{vXA} offset:256
ds_read_b64_tr_b16 {vr(B2+4,2)}, v{vXA} offset:1024
s_mov_b32 s4, 0x{NLOG2E:08x}
""")
    for k in range(4):
        a(f"v_lshlrev_b32 v{E+k}, 16, v{W3R+k}\nv_mul_f32 v{E+k}, s4, v{E+k}")
    a(f"""
v_cvt_pk_bf16_f32 v{E+4}, v{E}, v{E+1}
v_cvt_pk_bf16_f32 v{E+5}, v{E+2}, v{E+3}
v_lshlrev_b32 v{E+6}, 16, v{E+4}
v_and_b32 v{E+7}, 0xffff0000, v{E+4}
v_lshlrev_b32 v{E+8}, 16, v{E+5}
v_and_b32 v{E+9}, 0xffff0000, v{E+5}
v_sub_f32 v{E}, v{E}, v{E+6}
v_sub_f32 v{E+1}, v{E+1}, v{E+7}
v_sub_f32 v{E+2}, v{E+2}, v{E+8}
v_sub_f32 v{E+3}, v{E+3}, v{E+9}
v_cmp_eq_u32 vcc, 0, v{vH}
v_cvt_pk_bf16_f32 v{E+6}, v{E}, v{E+1}
v_cvt_pk_bf16_f32 v{E+7}, v{E+2}, v{E+3}
v_cndmask_b32 v{B2+6}, v{E+6}, v{E+4}, vcc
v_cndmask_b32 v{B2+7}, v{E+7}, v{E+5}, vcc
""")
    a(f"""
s_waitcnt lgkmcnt(0)
v_cndmask_b32 v{B2+4}, 0, v{B2+4}, vcc
v_cndmask_b32 v{B2+5}, 0, v{B2+5}, vcc
@B6
""")
    for i in range(NR):
        p = RC + 4*i + 3
        a(f"s_mov_b64 exec, s[{56+2*i}:{57+2*i}]")
        if i >= 2: a(f"s_cbranch_execz K2_RB_DONE")
        a(f"""
v_add_u32 v{vCUR}, 4, v{vCUR}
s_waitcnt vmcnt({NR-1-i})
v_and_b32 v{t}, {IDXM}, v{RC+4*i+2}
ds_write_b32 v{p}, v{t} offset:{IDX}
v_and_b32 v{RC+4*i+2}, 0xff, v{RC+4*i+2}
v_add_u32 v{RC+4*i+2}, v{RC+4*i+2}, v{t+2+i}
ds_write_b64 v{t+2+i}, {vr(RC+4*i,2)} offset:{RB+40}
ds_write_b16 v{RC+4*i+2}, v{t+1} offset:{RB}
""")
    IR = T1
    a(f"""
K2_RB_DONE:
s_mov_b64 exec, -1
v_cmp_lt_u32 vcc, v{vCUR}, v{vEND}
s_mov_b64 exec, vcc
ds_write_b32 v{vCN}, v{t+1} offset:4
s_mov_b64 exec, -1
@B7
@A4
s_waitcnt lgkmcnt(0)
s_barrier
@A5
""")
    for u in range(DP):
        a(f"ds_read2_b32 {vr(IR+2*u,2)}, v{vIX} offset0:{32*u} offset1:{32*u+16}")
    a(f"""
ds_read_b64 {vr(IR+10,2)}, v{vCN}
ds_read_b128 {vr(AR,4)}, v{vRA0}
ds_read_b128 {vr(AR+4,4)}, v{vRA1}
""")
    def gissue(u, lg):
        a(f"""
s_add_u32 m0, s53, {0x800*(u&3)}
s_waitcnt lgkmcnt({lg})
v_add_u32 v{IR+2*u}, v{IR+2*u}, v{vGC0}
v_add_u32 v{IR+2*u+1}, v{IR+2*u+1}, v{vGC1}
buffer_load_dwordx4 v{IR+2*u}, s[32:35], 0 offen lds
buffer_load_dwordx4 v{IR+2*u+1}, s[32:35], 0 offen offset:1024 lds
""")
    gissue(0, DP+2)
    a(f"""
s_waitcnt lgkmcnt(0)
v_readfirstlane_b32 s48, v{IR+10}
v_readfirstlane_b32 s51, v{IR+11}
""")
    mfma(a, T0, AR, B2)
    mfma(a, T0, AR+4, B2+4, T0)
    a(f"""
s_min_u32 s48, s48, {CAP}
s_add_u32 s48, s48, 31
s_lshr_b32 s48, s48, 5
s_max_u32 s48, s48, 1
s_mov_b32 s49, 0
s_mov_b32 s50, 0
s_add_u32 s52, s53, {0x800*(DP&3)}
""")
    for u in range(1, GPRE): gissue(u, 0)
    a(f"""
@B8
s_waitcnt vmcnt({2*GPRE-2})
@B9
ds_read_b128 {vr(AP,4)}, v{vPA0}
ds_read_b128 {vr(AP+4,4)}, v{vPA1}
""")
    for u in range(GPRE, min(DP, 4)): gissue(u, 2)
    a("s_waitcnt lgkmcnt(0)")
    mfma(a, T0, AP, ID, T0)
    mfma(a, T0, AP+4, ID+4, T0)
    if DP == 5: gissue(4, 0)
    a("s_nop 7\n@A6\nK2_LOOP:")
    if PROFM == "C":
        a("s_memtime s[70:71]\ns_mov_b32 m0, s49\ns_waitcnt lgkmcnt(0)\ns_movreld_b32 s78, s70")
    k2_half(a, 0, T0, T1, "K2A")
    a("s_cbranch_scc0 K2_DONE")
    k2_half(a, 1, T1, T0, "K2B")
    a("s_cbranch_scc1 K2_LOOP\nK2_DONE:\n@A7\ns_waitcnt lgkmcnt(0)")
    mfma(a, AGG, M, OH, AGG)
    mfma(a, AGG, M+4, OH+4, AGG)
    a(f"""
s_waitcnt vmcnt(0)
s_cmp_eq_u32 s51, 0
s_cbranch_scc1 K2_EPI
s_barrier
""")
    k2_addr_init(a)
    k2_zero(a)
    a(f"""
s_waitcnt lgkmcnt(0)
s_barrier
s_branch K2_ROUND
K2_EPI:
@A8
""")
    a(f"s_mov_b32 s6, 0x{NLN2:08x}")
    for r in range(8):
        a(f"v_lshlrev_b32 v{XF+2*r}, 16, v{UB+r}\nv_and_b32 v{XF+2*r+1}, 0xffff0000, v{UB+r}")
    for r in range(16):
        a(f"v_mul_f32 v{AGG+r}, s6, v{AGG+r}")
    for r in range(8):
        a(f"v_cvt_pk_bf16_f32 v{M+r}, v{AGG+2*r}, v{AGG+2*r+1}")
    a(f"""
v_add_u32 v232, s53, v{vWF}
ds_write_b128 v232, {vr(M,4)}
ds_write_b128 v232, {vr(M+4,4)} offset:1024
s_waitcnt lgkmcnt(0)
s_barrier
@A9
""")
    for s in range(8):
        a(f"ds_read_b128 {vr(T1+4*s,4)}, v{vWF} offset:{8192*(s>>1) + 1024*(s&1)}")
    a(f"""
v_lshlrev_b32 v232, 1, v{vH}
v_xor_b32 v232, v232, v252
v_lshlrev_b32 v232, 4, v232
v_lshl_or_b32 v232, v248, 6, v232
v_add_u32 v232, s53, v232
v_xor_b32 v233, 16, v232
v_lshrrev_b32 v228, 2, v1
v_bfe_u32 v229, v1, 4, 2
v_xor_b32 v229, v229, v253
v_lshlrev_b32 v229, 4, v229
v_lshl_or_b32 v229, v228, 6, v229
v_add_u32 v229, s53, v229
v_lshlrev_b32 v230, 4, v253
v_lshl_or_b32 v230, v228, 8, v230
v_add_u32 v230, s5, v230
v_add_u32 v231, 0x1000, v230
v_add_u32 v234, 16, v228
v_cmp_gt_u32 s[56:57], s46, v228
v_cmp_gt_u32 s[58:59], s46, v234
s_mov_b32 s6, 0x{NLOG2E:08x}
""")
    for s in range(8):
        a(f"s_waitcnt lgkmcnt({7-s})")
        mfma(a, XF, WU+4*s, T1+4*s, XF)
    a("s_nop 7\ns_nop 7")
    for r in range(16):
        a(f"v_mul_f32 v{E+r}, s6, v{XF+r}")
    for r in range(16):
        a(f"v_exp_f32 v{E+r}, v{E+r}")
    for r in range(8):
        a(f"v_pk_add_f32 {vr(E+2*r,2)}, {vr(E+2*r,2)}, 1.0 op_sel_hi:[1,0]")
    for r in range(16):
        a(f"v_rcp_f32 v{E+r}, v{E+r}")
    for r in range(8):
        a(f"v_pk_mul_f32 {vr(E+2*r,2)}, {vr(E+2*r,2)}, {vr(XF+2*r,2)}")
    for r in range(8):
        a(f"v_cvt_pk_bf16_f32 v{M+r}, v{E+2*r}, v{E+2*r+1}")
    a(f"""
ds_write_b128 v232, {vr(M,4)} offset:2048
ds_write_b128 v233, {vr(M+4,4)} offset:2048
s_waitcnt lgkmcnt(0)
ds_read_b128 {vr(AP,4)}, v229 offset:2048
ds_read_b128 {vr(AP+4,4)}, v229 offset:3072
s_mov_b64 exec, s[56:57]
s_waitcnt lgkmcnt(1)
buffer_store_dwordx4 {vr(AP,4)}, v230, s[36:39], 0 offen{K2SC}
s_mov_b64 exec, s[58:59]
s_waitcnt lgkmcnt(0)
buffer_store_dwordx4 {vr(AP+4,4)}, v231, s[36:39], 0 offen{K2SC}
@P1
K2_END:
s_endpgm
""")

def desc(name, vg):
    return f""".amdhsa_kernel {name}
  .amdhsa_next_free_vgpr {vg}
  .amdhsa_next_free_sgpr 96
  .amdhsa_accum_offset {vg}
  .amdhsa_group_segment_fixed_size 0
  .amdhsa_kernarg_size 72
  .amdhsa_user_sgpr_count 2
  .amdhsa_user_sgpr_kernarg_segment_ptr 1
  .amdhsa_system_sgpr_workgroup_id_x 1
.end_amdhsa_kernel
"""

def main(out):
    ref = open(f"cdna_kernels/{NAME}.s.ref").read().split("\n")
    hdr = [l for l in ref if l.startswith(";") and "@launch" not in l and "Override" not in l and "grid=ceil" not in l]
    k1n, k2n = "mpnn_prep_kernel", f"{NAME}_kernel"
    t = "\n".join(hdr) + "\n"
    t += f"; @launch kernel={k1n} grid=({K1_GRID},1,1) block=(640,1,1) lds={K1_LDS}\n"
    t += f"; @launch kernel={k2n} grid=(512,1,1) block=(256,1,1) lds={K2_LDS}\n"
    t += '.amdgcn_target "amdgcn-amd-amdhsa--gfx950"\n.text\n'
    for n, f in ((k1n, k1), (k2n, k2)):
        a = A(); f(a)
        t += f".globl {n}\n.p2align 8\n.type {n},@function\n{n}:\n" + a.text()
    t += '.section .rodata,"a"\n.p2align 6\n' + desc(k1n, 160) + ".p2align 6\n" + desc(k2n, 256)
    open(out, "w").write(t)

if __name__ == "__main__":
    main(sys.argv[1] if len(sys.argv) > 1 else f"cdna_kernels/{NAME}.s")
```

```python
import sys, struct, os
sys.path.insert(0, os.path.dirname(os.path.abspath(__file__)))
import haz
VERB = bool(os.environ.get('VERB'))

NAME = "gather_scatter__mpnn_edge_mlp__graph"
def f2u(x): return struct.unpack("<I", struct.pack("<f", x))[0]
NLOG2E = f2u(-1.4426950408889634)
NLN2 = f2u(-0.6931471805599453)

PW = 4096
PSTR = 0x280000
QW = PW + PSTR
UW = PW + 2 * PSTR
REC = 0x780000
TAB = 0x960000
WF = 0x980000
WS_SIZE = 0x990000
K1SC = os.environ.get("K1SC", " sc0 sc1")
K2SC = os.environ.get("K2SC", " sc0 sc1")
K1_LDS = 90112
ROTX = int(os.environ.get("ROTX", "16384"))
ROTW = int(os.environ.get("ROTW", "128"))
NCH = 64
CHE = 2500
K1_GRID = 256
CPF = int(os.environ.get("CPF", "0"))
DP = 3
NT = 13
PRIO = os.environ.get("PRIO", "10")
HALF = int(os.environ.get("HALF", "1"))

class A:
    def __init__(s): s.l = []
    def __call__(s, t):
        for x in t.strip("\n").split("\n"):
            if x.strip().startswith("@"):
                x = x.strip()
                if x[1] in "SR": stamp(s, int(x[2:]), x[1] == "R")
                elif x[1] in "AB":
                    if PROFM == x[1]: stamp(s, int(x[2:]))
                else: prof_out(s, int(x[2:]), 32)
                continue
            s.l.append("    " + x.strip() if not x.strip().endswith(":") else x.strip())
    def text(s): return "\n".join(haz.pad(s.l, VERB)) + "\n"

def srd(a, d, b, n):
    a(f"s_mov_b32 s{d}, s{b}\ns_mov_b32 s{d+1}, s{b+1}\ns_mov_b32 s{d+2}, {n}\ns_mov_b32 s{d+3}, 0x00020000")

PROF = bool(os.environ.get('PROF'))
PROFB = 0x1000000
PROFM = os.environ.get('PROF', '')
def stamp(a, i, real=False):
    if PROF:
        a(f"s_{'memrealtime' if real else 'memtime'} s[{72+2*i}:{73+2*i}]")
def prof_out(a, kid, wsr):
    if not PROF: return
    if kid == 0: stamp(a, 9)
    a("s_waitcnt vmcnt(0)")
    stamp(a, 10); stamp(a, 11, True)
    a(f"""
s_mov_b64 exec, 1
s_waitcnt lgkmcnt(0)
v_lshrrev_b32 v1, 6, v0
v_lshlrev_b32 v1, 6, v1
s_lshl_b32 s3, s2, 10
s_add_u32 s3, s3, {PROFB + kid*0x100000}
s_mov_b32 s{wsr+2}, 0x2000000
""")
    for j in range(3):
        for u in range(4):
            a(f"v_mov_b32 v{4+u}, s{72+2*(4*j+u)}")
        a(f"buffer_store_dwordx4 v[4:7], v1, s[{wsr}:{wsr+3}], s3 offen offset:{16*j}\ns_nop 1")
    a("s_getreg_b32 s4, hwreg(HW_REG_HW_ID)\ns_getreg_b32 s5, hwreg(HW_REG_XCC_ID)\nv_mov_b32 v4, s4\nv_mov_b32 v5, s5\nv_mov_b32 v6, s48\nv_mov_b32 v7, 1")
    a(f"buffer_store_dwordx4 v[4:7], v1, s[{wsr}:{wsr+3}], s3 offen offset:48")

def vr(b, n): return f"v[{b}:{b+n-1}]"

def k1(a):
    XA, XB, WA, C0, C1, PK, ST = 64, 96, 32, 128, 144, 16, 24
    a(f"""
s_cmp_ge_u32 s2, {K1_GRID}
s_cbranch_scc1 K1_END
@R0
@S1
s_load_dwordx16 s[8:23], s[0:1], 0
s_load_dwordx2 s[24:25], s[0:1], 64
""")
    if CPF & 1:
        a(f"""
s_getpc_b64 s[4:5]
K1_PC:
v_subrev_u32 v1, 512, v0
v_lshlrev_b32 v1, 7, v1
s_mov_b32 s6, K2_END-K1_PC
v_cmp_gt_u32 vcc, s6, v1
s_cbranch_vccz K1_PF2
s_mov_b64 exec, vcc
global_load_dword v70, v1, s[4:5]
s_mov_b64 exec, -1
K1_PF2:
""")
    a(f"""
s_cmp_lt_u32 s2, {NCH}
s_cbranch_scc1 K1_SORT
""")
    a(f"""
v_lshrrev_b32 v2, 6, v0
v_and_b32 v1, 63, v0
s_lshr_b32 s44, s2, 6
v_readfirstlane_b32 s27, v2
s_and_b32 s3, s2, 63
s_cmp_ge_u32 s27, 8
s_cbranch_scc1 {"K1_PF" if CPF & 1 else "K1_END"}
v_lshrrev_b32 v2, 4, v1
v_and_b32 v3, 15, v1
v_lshlrev_b32 v4, 2, v2
v_xor_b32 v4, v3, v4
v_lshlrev_b32 v4, 4, v4
v_lshl_or_b32 v4, v2, 8, v4
s_lshl_b32 s4, s27, 2
v_add_u32 v5, s4, v2
v_and_b32 v6, 15, v5
v_xor_b32 v6, v3, v6
v_lshlrev_b32 v6, 4, v6
v_lshl_or_b32 v6, v5, 8, v6
s_mul_i32 s5, s3, 40960
s_lshl_b32 s6, s27, 12
s_cmp_eq_u32 s44, 2
s_cselect_b32 s49, 0x8000, 0
s_mov_b32 s47, 3
s_movk_i32 s48, 1024
s_cmp_lg_u32 s3, 63
s_cbranch_scc1 K1_G1
s_cmp_lg_u32 s44, 3
s_cbranch_scc1 K1_END
s_mov_b32 s47, 2
s_movk_i32 s48, 0x800
s_mov_b32 s49, 0x8000
K1_G1:
s_add_u32 s49, s49, s6
s_and_b32 s26, s27, 3
s_mov_b32 s38, 65536
s_mov_b32 s39, 0x00020000
s_mov_b32 s30, 2560000
s_mov_b32 s31, 0x00020000
s_lshl_b32 s7, s27, 10
s_mul_i32 s4, s44, {ROTX}
""")
    for b in range(5):
        a(f"""
s_add_u32 s{52+b}, s4, {8192*b}
s_cmp_ge_u32 s{52+b}, 40960
s_cselect_b32 s57, 40960, 0
s_sub_u32 s{52+b}, s{52+b}, s57
s_cmp_ge_u32 s{52+b}, 40960
s_cselect_b32 s57, 40960, 0
s_sub_u32 s{52+b}, s{52+b}, s57
s_add_u32 s{52+b}, s{52+b}, s5
""")
    a(f"s_mul_i32 s4, s3, {ROTW}")
    for i in range(4):
        a(f"s_add_u32 s{60+i}, s4, {1024*i}\ns_and_b32 s{60+i}, s{60+i}, 0xc00")
    a(f"""
s_add_u32 m0, s7, 32768
s_cmp_eq_u32 s44, 3
s_waitcnt lgkmcnt(0)
@S2
s_mov_b32 s28, s8
s_mov_b32 s29, s9
buffer_load_dwordx4 v6, s[28:31], s52 offen lds
s_cselect_b32 s36, s18, s16
s_cselect_b32 s37, s19, s17
s_add_u32 m0, s7, {32768 + 8192}
s_nop 0
buffer_load_dwordx4 v6, s[28:31], s53 offen lds
""")
    for i in range(4):
        a(f"""
s_add_u32 m0, s6, s{60+i}
s_add_u32 s4, s49, s{60+i}
buffer_load_dwordx4 v4, s[36:39], s4 offen lds
""")
    for b in range(2, 5):
        a(f"""
s_add_u32 m0, s7, {32768 + 8192*b}
s_nop 0
buffer_load_dwordx4 v6, s[28:31], s{52+b} offen lds
""")
    srd(a, 32, 24, WS_SIZE)
    a(f"""
v_and_b32 v8, 1, v1
v_lshlrev_b32 v8, 4, v8
v_bfe_u32 v9, v1, 1, 1
v_lshl_or_b32 v8, v9, 2, v8
v_bfe_u32 v9, v1, 4, 1
v_lshl_or_b32 v8, v9, 3, v8
v_bfe_u32 v10, v1, 2, 2
v_lshrrev_b32 v11, 5, v1
v_lshlrev_b32 v12, s47, v11
v_add_u32 v12, v12, v10
v_lshrrev_b32 v9, 3, v8
s_lshl_b32 s4, s26, 2
v_add_u32 v9, s4, v9
v_lshlrev_b32 v10, 2, v10
v_xor_b32 v9, v9, v10
v_lshlrev_b32 v9, 4, v9
v_lshl_or_b32 v9, v12, 8, v9
v_and_b32 v8, 4, v8
v_lshl_or_b32 v8, v8, 1, v9
v_add_u32 v9, s48, v8
v_and_b32 v12, 31, v1
v_xor_b32 v13, v11, v3
v_lshlrev_b32 v13, 4, v13
v_lshl_or_b32 v13, v12, 8, v13
s_lshr_b32 s45, s27, 2
s_lshl_b32 s4, s45, 13
s_add_u32 s4, s4, 32768
v_add_u32 v13, s4, v13
""")
    for s in range(8):
        a(f"v_xor_b32 v{ST+s}, {32*s}, v13")
    a(f"""
s_lshl_b32 s4, s27, 11
s_add_u32 s4, s4, 73728
v_bfe_u32 v14, v1, 2, 2
v_lshlrev_b32 v15, 1, v11
v_xor_b32 v14, v14, v15
v_lshlrev_b32 v14, 4, v14
v_lshl_or_b32 v14, v12, 6, v14
v_add_u32 v14, s4, v14
v_xor_b32 v15, 16, v14
v_and_b32 v2, 3, v2
v_and_b32 v3, 3, v1
v_xor_b32 v2, v2, v3
v_lshlrev_b32 v2, 4, v2
v_lshrrev_b32 v5, 2, v1
v_lshl_or_b32 v2, v5, 6, v2
v_add_u32 v2, s4, v2
v_lshlrev_b32 v3, 4, v3
v_lshl_or_b32 v3, v5, 8, v3
v_add_u32 v7, 0x1000, v3
s_lshl_b32 s4, s26, 6
s_mul_i32 s6, s44, {PSTR}
s_add_u32 s4, s4, s6
s_add_u32 s4, s4, {(PW - PSTR) & 0xffffffff}
s_cmp_eq_u32 s45, 0
s_cselect_b32 s52, s52, s53
s_cselect_b32 s53, s54, s55
s_add_u32 s52, s52, s4
s_add_u32 s53, s53, s4
s_add_u32 s54, s56, s4
s_cmp_eq_u32 s44, 3
s_cselect_b32 s6, 1.0, 0x{NLOG2E:08x}
s_waitcnt vmcnt(3)
@S3
s_barrier
@S4
""")
    def xrd(X, blk, s): return f"ds_read_b128 {vr(X+4*s,4)}, v{ST+s} offset:{16384*blk}"
    def post(C):
        l = [f"v_mul_f32 v{C+r}, s6, v{C+r}" for r in range(16)]
        l += [f"v_cvt_pk_bf16_f32 v{PK+r}, v{C+2*r}, v{C+2*r+1}" for r in range(8)]
        l += [f"ds_write_b128 v14, {vr(PK,4)}", f"ds_write_b128 v15, {vr(PK+4,4)}",
              f"ds_read_b128 {vr(C,4)}, v2", f"ds_read_b128 {vr(C+4,4)}, v2 offset:1024"]
        return l
    def store(C, so):
        a(f"""
s_waitcnt lgkmcnt(1)
buffer_store_dwordx4 {vr(C,4)}, v3, s[32:35], s{so} offen{K1SC}
s_waitcnt lgkmcnt(0)
buffer_store_dwordx4 {vr(C+4,4)}, v7, s[32:35], s{so} offen{K1SC}
""")
    def rd3(s):
        a(f"ds_read_b64_tr_b16 v[{WA+4*s}:{WA+1+4*s}], v8 offset:{4096*s}")
        a(f"ds_read_b64_tr_b16 v[{WA+2+4*s}:{WA+3+4*s}], v9 offset:{4096*s}")
        a(xrd(XA, 0, s))
    for s in range(4): rd3(s)
    for s in range(8):
        if s < 4: rd3(s + 4)
        a(f"s_waitcnt lgkmcnt({12 if s < 4 else 3*(7-s)})")
        mfma(a, C0, WA+4*s, XA+4*s, None if s == 0 else C0)
    a(f"""
s_cmp_eq_u32 s3, 63
s_cbranch_scc1 K1_PREP
s_waitcnt vmcnt(0)
@S5
s_barrier
@S6
""")
    for s in range(8): a(xrd(XB, 1, s))
    fill = post(C0)
    pre = fill[:8]; fill = fill[8:] + [xrd(XA, 2, s) for s in range(8)]
    for x in pre: a(x)
    cuts = [4, 8, 12, 16, 20, 24, 28, 28]
    for s in range(8):
        if s < 4: a(f"s_waitcnt lgkmcnt({7-s if s < 3 else 0})")
        mfma(a, C1, WA+4*s, XB+4*s, None if s == 0 else C1)
        for x in fill[(cuts[s-1] if s else 0):cuts[s]]: a(x)
    a("@S7")
    store(C0, 52)
    a("s_cmp_eq_u32 s45, 0\ns_cbranch_scc0 K1_G2")
    fill = post(C1)
    CX = XB
    cuts = [0, 4, 9, 14, 19, 24, 28, 28]
    for s in range(8):
        mfma(a, CX, WA+4*s, XA+4*s, None if s == 0 else CX)
        for x in fill[(cuts[s-1] if s else 0):cuts[s]]: a(x)
    store(C1, 53)
    for x in post(CX): a(x)
    store(CX, 54)
    a("@P0\ns_endpgm\nK1_G2:\ns_nop 5")
    for x in post(C1): a(x)
    store(C1, 53)
    a(f"""
@P0
s_endpgm
K1_PREP:
s_waitcnt vmcnt(0)
s_cmp_ge_u32 s27, 4
s_cbranch_scc1 K1_END
s_lshl_b32 s6, s26, 13
s_add_u32 s4, s6, {WF}
v_lshlrev_b32 v2, 4, v1
v_add_u32 v2, s4, v2
v_add_u32 v3, 0x1000, v2
s_waitcnt lgkmcnt(0)
""")
    for s in range(8):
        a(f"buffer_store_dwordx4 {vr(WA+4*s,4)}, v{2+(s>>2)}, s[32:35], 0 offen offset:{1024*(s&3)}{K1SC}")
    a("s_endpgm")
    IMG = 8192
    a(f"""
K1_SORT:
s_mul_i32 s3, s2, {CHE*4}
v_lshlrev_b32 v28, 4, v0
v_add_u32 v1, s3, v28
v_lshlrev_b32 v2, 1, v1
s_mov_b32 s30, 640000
s_mov_b32 s31, 0x00020000
s_mov_b32 s38, 640000
s_mov_b32 s39, 0x00020000
s_mov_b32 s42, 1280000
s_mov_b32 s43, 0x00020000
s_movk_i32 s4, 625
v_cmp_gt_u32 s[26:27], s4, v0
v_lshlrev_b32 v3, 2, v0
v_mov_b32 v30, 0
v_mov_b32 v31, 1
s_waitcnt lgkmcnt(0)
@S2
s_mov_b32 s28, s14
s_mov_b32 s29, s15
buffer_load_dwordx4 v[4:7], v1, s[28:31], 0 offen
s_mov_b32 s36, s12
s_mov_b32 s37, s13
s_mov_b32 s40, s10
s_mov_b32 s41, s11
ds_write_b32 v3, v30
s_waitcnt lgkmcnt(0)
s_barrier
buffer_load_dwordx4 v[8:11], v1, s[36:39], 0 offen
buffer_load_dwordx4 v[12:15], v2, s[40:43], 0 offen
buffer_load_dwordx4 v[24:27], v2, s[40:43], 0 offen offset:16
s_movk_i32 s5, 3355
s_mov_b32 s6, 1280180
v_and_b32 v3, 63, v0
v_lshlrev_b32 v3, 5, v3
""")
    srd(a, 32, 24, WS_SIZE)
    a("s_mov_b64 exec, s[26:27]\ns_waitcnt vmcnt(3)\n@S3")
    for i in range(4):
        a(f"""
v_mul_u32_u24 v{4+i}, s5, v{4+i}
v_lshrrev_b32 v{32+i}, 16, v{4+i}
v_lshlrev_b32 v{32+i}, 2, v{32+i}
ds_add_rtn_u32 v{36+i}, v{32+i}, v31
""")
    for i in range(4):
        a(f"""
v_and_b32 v{4+i}, 0xffff, v{4+i}
v_mul_hi_u32_u24 v{4+i}, s6, v{4+i}
v_lshlrev_b32 v{4+i}, 1, v{4+i}
""")
    a(f"""
v_cmp_gt_u32 vcc, 64, v0
s_lshl_b32 s7, s2, 11
s_add_u32 s7, s7, {TAB}
s_waitcnt lgkmcnt(0)
@S4
s_barrier
s_cbranch_vccz K1_S2
ds_read_b128 v[48:51], v3
ds_read_b128 v[52:55], v3 offset:16
s_waitcnt lgkmcnt(0)
""")
    for j in range(1, 8):
        a(f"v_add_u32 v{48+j}, v{48+j}, v{47+j}")
    a(f"""
v_mov_b32 v56, v55
s_nop 1
v_add_u32_dpp v56, v56, v56 row_shr:1 row_mask:0xf bank_mask:0xf bound_ctrl:0
s_nop 1
v_add_u32_dpp v56, v56, v56 row_shr:2 row_mask:0xf bank_mask:0xf bound_ctrl:0
s_nop 1
v_add_u32_dpp v56, v56, v56 row_shr:4 row_mask:0xf bank_mask:0xf bound_ctrl:0
s_nop 1
v_add_u32_dpp v56, v56, v56 row_shr:8 row_mask:0xf bank_mask:0xf bound_ctrl:0
s_nop 1
v_add_u32_dpp v56, v56, v56 row_bcast:15 row_mask:0xa bank_mask:0xf
s_nop 1
v_add_u32_dpp v56, v56, v56 row_bcast:31 row_mask:0xc bank_mask:0xf
v_sub_u32 v56, v56, v55
""")
    for j in range(1, 8):
        a(f"v_add_u32 v{56+j}, v56, v{47+j}")
    a(f"""
v_add_u32 v64, v56, v55
ds_write_b128 v3, v[56:59] offset:4096
ds_write_b128 v3, v[60:63] offset:4112
""")
    for j in range(8):
        a(f"v_lshl_or_b32 v{48+j}, v{57+j}, 16, v{56+j}")
    a(f"""
s_waitcnt lgkmcnt(0)
K1_S2:
s_barrier
@S5
ds_read_b32 v40, v32 offset:4096
ds_read_b32 v41, v33 offset:4096
ds_read_b32 v42, v34 offset:4096
ds_read_b32 v43, v35 offset:4096
s_mul_i32 s3, s2, {CHE*12}
s_add_u32 s3, s3, {REC}
s_movk_i32 s4, {IMG}
s_waitcnt vmcnt(2)
@S6
""")
    for i in range(4):
        a(f"v_lshl_or_b32 v{4+i}, v{8+i}, 8, v{4+i}")
    er = [12, 14, 24, 26]
    for i in range(4):
        a(f"""
s_waitcnt lgkmcnt({3+i})
v_add_u32 v{40+i}, v{40+i}, v{36+i}
v_mad_u32_u24 v{40+i}, v{40+i}, 12, s4
""")
        if i in (0, 2): a(f"s_waitcnt vmcnt({1 - i//2})")
        a(f"""
ds_write2_b32 v{40+i}, v{er[i]}, v{er[i]+1} offset1:1
ds_write_b32 v{40+i}, v{4+i} offset:8
""")
    a(f"""
s_mov_b64 exec, -1
s_cbranch_vccz K1_S3
buffer_store_dwordx4 v[48:51], v3, s[32:35], s7 offen{K1SC}
buffer_store_dwordx4 v[52:55], v3, s[32:35], s7 offen offset:16{K1SC}
K1_S3:
s_movk_i32 s4, {1875 - 1280}
v_cmp_gt_u32 vcc, s4, v0
s_add_u32 s5, s3, 10240
s_add_u32 s6, s3, 20480
s_waitcnt lgkmcnt(0)
@S7
s_barrier
@S8
ds_read_b128 v[4:7], v28 offset:{IMG}
ds_read_b128 v[8:11], v28 offset:{IMG+10240}
ds_read_b128 v[12:15], v28 offset:{IMG+20480}
s_waitcnt lgkmcnt(2)
buffer_store_dwordx4 v[4:7], v28, s[32:35], s3 offen{K1SC}
s_waitcnt lgkmcnt(1)
buffer_store_dwordx4 v[8:11], v28, s[32:35], s5 offen{K1SC}
s_mov_b64 exec, vcc
s_waitcnt lgkmcnt(0)
buffer_store_dwordx4 v[12:15], v28, s[32:35], s6 offen{K1SC}
@P0
K1_END:
s_endpgm
""")
    a("K1_PF:\ns_waitcnt vmcnt(0)\ns_endpgm")

RING = 0; RB = 32768; IDX = RB + 20480; NZ = 6; XT = RB + 24576; CNT = XT + 8192; K2_LDS = CNT + 16
CAP = 416
T0, T1, E, AGG, M, AP, AR, OH, ID, B2, XF, WU, RC = 16, 32, 48, 64, 80, 88, 96, 104, 112, 120, 128, 160, 224
vPA0, vPA1, vRA0, vRA1, vTR, vIX, vG0, vGC0, vCUR, vEND, vWF, vH, vG1, vGC1 = 2, 3, 4, 5, 6, 7, 8, 9, 10, 11, 12, 13, 14, 15
W3R = 244
vN, vRB, vZ, vCN, vQ2, vQ, vOOB, vXA = 248, 249, 250, 251, 252, 253, 254, 255
NR = 5
IDXM = os.environ.get("IDXM", "0xffffff00")
GPRE = int(os.environ.get("GPRE", "2"))
PF = int(os.environ.get("PF", "0"))

def mfma(a, d, x, y, c=None):
    cc = "0" if c is None else vr(c, 16)
    a(f"v_mfma_f32_32x32x16_bf16 {vr(d,16)}, {vr(x,4)}, {vr(y,4)}, {cc}")

def wu_loads(a):
    for s in range(8):
        so = "s54" if s < 4 else "s55"
        a(f"buffer_load_dwordx4 {vr(WU+4*s,4)}, v{vWF}, s[32:35], {so} offen offset:{1024*(s&3)}")
    a(f"buffer_load_dwordx4 {vr(XF+16,4)}, v{XF+24}, s[32:35], s9 offen")
    a(f"buffer_load_dwordx4 {vr(XF+20,4)}, v{XF+24}, s[32:35], s9 offen offset:16")

def k2_tile(a, p, pr, nreg=16):
    Tc, Tn = (T0, T1) if p % 2 == 0 else (T1, T0)
    last = p == NT - 1
    gi = p + DP < NT
    hi, lo = pr
    if not last:
        a(f"s_waitcnt vmcnt({2 if p + DP <= NT else 10}) lgkmcnt(0)")
        a(f"""
ds_read_b128 {vr(AP,4)}, v{vPA0} offset:{2048*((p+1)&1)}
ds_read_b128 {vr(AP+4,4)}, v{vPA1} offset:{2048*((p+1)&1)}
ds_read_b128 {vr(AR,4)}, v{vRA0} offset:{1536*(p+1)}
ds_read_b128 {vr(AR+4,4)}, v{vRA1} offset:{1536*(p+1)}
""")
    else:
        a("s_waitcnt lgkmcnt(0)")
    if gi:
        a(f"""
ds_read_b32 v{vG0}, v{vIX} offset:{128*(p+DP)}
ds_read_b32 v{vG1}, v{vIX} offset:{128*(p+DP)+64}
s_add_u32 m0, s53, {2048*((p+DP)&1)}
""")
    a(f"s_setprio {hi}")
    for r in range(nreg):
        if r == 0: mfma(a, AGG, M, OH, AGG)
        if r == 3: mfma(a, AGG, M+4, OH+4, AGG)
        a(f"v_exp_f32 v{E+r}, v{Tc+r}")
    a(f"s_setprio {lo}")
    for r in range(nreg // 2):
        a(f"v_pk_add_f32 {vr(E+2*r,2)}, {vr(E+2*r,2)}, 1.0 op_sel_hi:[1,0]")
    if not last: a("s_waitcnt lgkmcnt(0)")
    trs = []
    for m in range(nreg // 8):
        trs.append(f"ds_read_b64_tr_b16 {vr(OH+4*m,2)}, v{vTR} offset:{1536*p + 48*16*m}")
        trs.append(f"ds_read_b64_tr_b16 {vr(OH+4*m+2,2)}, v{vTR} offset:{1536*p + 48*16*m + 48*8}")
    if gi:
        a(f"buffer_load_dwordx4 v[{vG0}:{vGC0}], s[68:71], 0 idxen offen lds")
        a(f"s_add_u32 m0, s53, {2048*((p+DP)&1) + 1024}")
        a(trs.pop(0))
        a(f"buffer_load_dwordx4 v[{vG1}:{vGC1}], s[68:71], 0 idxen offen lds")
    for x in trs: a(x)
    if p + DP == NT: wu_loads(a)
    a(f"s_setprio {hi}")
    for r in range(nreg):
        if not last:
            if r == 0: mfma(a, Tn, AP, ID)
            if r == 3: mfma(a, Tn, AP+4, ID+4, Tn)
            if r == 6: mfma(a, Tn, AR, B2, Tn)
            if r == 9: mfma(a, Tn, AR+4, B2+4, Tn)
        a(f"v_rcp_f32 v{E+r}, v{E+r}")
    a(f"s_setprio {lo}")
    for r in range(nreg // 2):
        a(f"v_pk_mul_f32 {vr(E+2*r,2)}, {vr(E+2*r,2)}, {vr(Tc+2*r,2)}")
    for r in range(nreg // 2):
        a(f"v_cvt_pk_bf16_f32 v{M+r}, v{E+2*r}, v{E+2*r+1}")
    if last:
        a("s_waitcnt lgkmcnt(0)")
        mfma(a, AGG, M, OH, AGG)
        if nreg == 16: mfma(a, AGG, M+4, OH+4, AGG)

def k2_main(a, sfx, pr):
    order = [3, 2, 4, 1, 5, 0, 6, 7, 8, 9, 10, 11, 12]
    a(f"s_bitcmp1_b32 s49, 0\ns_cbranch_scc1 K2_ODD{sfx}")
    for par in (0, 1):
        Td = T1 if par else T0
        if par: a(f"K2_ODD{sfx}:")
        mfma(a, Td, AP, ID, T0)
        mfma(a, Td, AP+4, ID+4, Td)
        a("s_nop 7\n@A6")
        es = [e for e in order if e % 2 == par]
        for e in es[:-1]:
            a(f"s_cmp_eq_u32 s49, {e}\ns_cbranch_scc1 K2_T{e}{sfx}")
        a(f"s_branch K2_T{es[-1]}{sfx}")
    for p in range(NT):
        a(f"K2_T{p}{sfx}:")
        if p == NT - 1 and HALF:
            a(f"s_cmp_lg_u32 s50, 0\ns_cbranch_scc1 K2_TH{sfx}")
        k2_tile(a, p, pr)
    if HALF:
        a(f"s_branch K2_DONE\nK2_TH{sfx}:")
        k2_tile(a, NT - 1, pr, 8)

def k2_addr_init(a):
    t = AP
    a(f"""
v_mul_u32_u24 v{vRA1}, 48, v{vN}
v_lshl_add_u32 v{vRA0}, v{vH}, 4, v{vRA1}
v_add_u32 v{vRA0}, {RB}, v{vRA0}
v_add_u32 v{vRA1}, {RB+32}, v{vRA1}
v_lshl_add_u32 v{vTR}, v{vH}, 2, v{vQ2}
v_mul_u32_u24 v{vTR}, 48, v{vTR}
v_bfe_u32 v{t}, v1, 4, 1
v_lshl_or_b32 v{t}, v{t}, 2, v{vQ}
v_lshl_add_u32 v{vTR}, v{t}, 3, v{vTR}
v_add_u32 v{vTR}, {RB}, v{vTR}
v_and_b32 v{vIX}, 60, v1
v_add_u32 v{vIX}, {IDX}, v{vIX}
v_xor_b32 v{vPA0}, v{vQ2}, v{vH}
v_lshlrev_b32 v{vPA0}, 4, v{vPA0}
v_lshl_or_b32 v{vPA0}, v{vN}, 6, v{vPA0}
v_add_u32 v{vPA0}, s53, v{vPA0}
v_xor_b32 v{vPA1}, 32, v{vPA0}
""")
    for r in range(8):
        a(f"v_mov_b32 v{M+r}, 0\nv_mov_b32 v{OH+r}, 0")

def k2_zero(a):
    for j in range(NZ):
        a(f"ds_write_b128 v{vZ}, {vr(M,4)} offset:{RB + 4096*j}")
    a(f"ds_write_b64 v{vCN}, {vr(M,2)}")

def k2(a):
    t = AR
    UB = XF + 16
    a(f"""
s_cmpk_ge_u32 s2, 512
s_cbranch_scc1 K2_END
@R0
@S1
s_load_dwordx2 s[24:25], s[0:1], 64
s_load_dwordx2 s[16:17], s[0:1], 32
s_load_dwordx2 s[20:21], s[0:1], 48
""")
    if CPF & 2:
        a(f"""
s_getpc_b64 s[4:5]
K2_PC:
v_lshlrev_b32 v1, 7, v0
s_mov_b32 s6, K2_END-K2_PC
v_cmp_gt_u32 vcc, s6, v1
s_cbranch_vccz K2_PF2
s_mov_b64 exec, vcc
global_load_dword v{RC}, v1, s[4:5]
s_mov_b64 exec, -1
K2_PF2:
""")
    a(f"""
v_lshrrev_b32 v{vH}, 6, v0
v_and_b32 v1, 63, v0
s_and_b32 s44, s2, 7
v_readfirstlane_b32 s47, v{vH}
s_lshl_b32 s44, s44, 6
s_lshr_b32 s43, s2, 3
s_add_u32 s44, s44, s43
v_lshrrev_b32 v{t}, 2, v0
v_lshlrev_b32 v{t+1}, 11, v{t}
s_lshl_b32 s3, s44, 2
s_add_u32 s3, s3, {TAB}
s_mov_b32 s34, {WS_SIZE}
s_mov_b32 s35, 0x00020000
s_mul_i32 s45, s44, 1280169
s_add_u32 s46, s45, {1280169+65535}
s_add_u32 s45, s45, 65535
s_lshr_b32 s45, s45, 16
s_lshr_b32 s46, s46, 16
s_min_u32 s46, s46, 10000
s_sub_u32 s46, s46, s45
s_movk_i32 s4, {CHE*12}
v_mul_u32_u24 v{vRB}, s4, v{t}
v_bfrev_b32 v{vOOB}, 2
v_lshrrev_b32 v{vH}, 5, v1
v_bfe_u32 v{vQ2}, v1, 2, 2
v_and_b32 v{vQ}, 3, v1
v_and_b32 v{vN}, 31, v1
s_lshl_b32 s5, s45, 8
s_lshl_b32 s4, s47, 6
s_add_u32 s5, s5, s4
v_lshrrev_b32 v{t+2}, 2, v1
v_lshlrev_b32 v{t+5}, 4, v{vQ}
v_lshl_or_b32 v{t+5}, v{t+2}, 8, v{t+5}
v_lshlrev_b32 v{t+6}, 5, v{vH}
v_lshl_or_b32 v{XF+24}, v{vN}, 8, v{t+6}
s_add_u32 s6, s5, {QW}
s_add_u32 s8, s5, {QW + 4096 - 1024}
s_add_u32 s9, s5, {UW}
s_lshl_b32 s7, s47, 11
s_add_u32 s7, s7, {XT}
s_mov_b32 m0, s7
s_add_u32 s4, s4, 65536
v_lshl_add_u32 v{t+7}, v{vN}, 1, s4
s_lshl_b32 s53, s47, 13
v_lshlrev_b32 v{vZ}, 4, v0
v_mov_b32 v{vCN}, {CNT}
s_mov_b32 s42, 66560
s_mov_b32 s43, 0x00020000
""")
    k2_addr_init(a)
    a(f"""
s_waitcnt lgkmcnt(0)
@S2
s_mov_b32 s32, s24
s_mov_b32 s33, s25
buffer_load_dword v{vEND}, v{t+1}, s[32:35], s3 offen
s_mov_b32 s40, s16
s_mov_b32 s41, s17
buffer_load_dwordx4 v{t+5}, s[32:35], s6 offen lds
s_mov_b64 exec, 0xffff
buffer_load_dwordx4 v{t+5}, s[32:35], s8 offen offset:1024 lds
s_mov_b64 exec, -1
""")
    for k in range(4):
        a(f"buffer_load_ushort v{W3R+k}, v{t+7}, s[40:43], 0 offen offset:{256*k}")
    k2_zero(a)
    srd(a, 36, 20, 2560000)
    a(f"""
v_lshlrev_b32 v{vWF}, 4, v1
s_add_u32 s54, s53, {WF}
s_add_u32 s55, s54, 0x1000
v_bfe_u32 v{t+2}, v1, 4, 2
v_xor_b32 v{vGC0}, v{vQ}, v{t+2}
s_lshl_b32 s4, s47, 6
v_lshl_add_u32 v{vGC0}, v{vGC0}, 4, s4
v_mov_b32 v{vGC1}, v{vGC0}
s_add_u32 s68, s24, {PW}
s_addc_u32 s69, s25, 0
s_or_b32 s69, s69, 0x1000000
s_mov_b32 s70, {PSTR}
s_mov_b32 s71, 0x00020000
v_lshl_add_u32 v{vXA}, v{vH}, 3, v{vQ2}
v_and_b32 v{t+2}, 1, v{t+2}
v_lshl_or_b32 v{t+2}, v{t+2}, 2, v{vQ}
v_lshlrev_b32 v{t+2}, 3, v{t+2}
v_lshl_or_b32 v{vXA}, v{vXA}, 6, v{t+2}
v_add_u32 v{vXA}, s7, v{vXA}
v_lshrrev_b32 v{t}, 1, v{vN}
v_lshlrev_b32 v{t+1}, 2, v{vH}
v_sub_u32 v{t}, v{t}, v{t+1}
v_and_b32 v{t+1}, 1, v1
v_lshlrev_b32 v{t+1}, 4, v{t+1}
v_mov_b32 v{t+2}, 0x3f80
v_lshlrev_b32 v{t+1}, v{t+1}, v{t+2}
""")
    for j in range(2):
        for u in range(4):
            a(f"v_cmp_eq_u32 vcc, {8*j+u}, v{t}")
            a(f"v_mov_b32 v{AGG+8*j+2*u}, 0\nv_mov_b32 v{AGG+8*j+2*u+1}, 0")
            a(f"v_cndmask_b32 v{ID+4*j+u}, 0, v{t+1}, vcc")
    a(f"""
s_mov_b32 s3, {REC}
@B3
s_waitcnt lgkmcnt(0)
s_barrier
@B4
s_waitcnt vmcnt(6)
@A3
v_and_b32 v{vCUR}, 0xffff, v{vEND}
v_lshrrev_b32 v{vEND}, 16, v{vEND}
v_add_u32 v{vCUR}, v{vCUR}, v{vQ}
K2_ROUND:
@B5
v_sub_u32 v{t+1}, v{vEND}, v{vCUR}
v_mad_u32_u24 v{t}, v{vCUR}, 12, v{vRB}
""")
    for i in range(NR):
        a(f"v_cmp_lt_i32 s[{56+2*i}:{57+2*i}], {4*i}, v{t+1}")
    for i in range(NR):
        a(f"""
v_cndmask_b32 v{t+2+i}, v{vOOB}, v{t}, s[{56+2*i}:{57+2*i}]
buffer_load_dwordx3 {vr(RC+4*i,3)}, v{t+2+i}, s[32:35], s3 offen offset:{48*i}
""")
    a("s_mov_b64 exec, 1")
    for i in range(NR):
        a(f"s_bcnt1_i32_b64 s{11+i}, s[{56+2*i}:{57+2*i}]")
    for i in range(1, NR):
        a(f"s_add_u32 s{11+i}, s{11+i}, s{10+i}")
    a(f"""
v_mov_b32 v{t}, s{10+NR}
ds_add_rtn_u32 v{t}, v{vCN}, v{t}
s_mov_b64 exec, -1
""")
    for i in range(NR):
        a(f"v_mbcnt_lo_u32_b32 v{RC+4*i+3}, s{56+2*i}, 0\nv_mbcnt_hi_u32_b32 v{RC+4*i+3}, s{57+2*i}, v{RC+4*i+3}")
    a(f"""
s_waitcnt lgkmcnt(0)
v_readfirstlane_b32 s10, v{t}
v_mov_b32 v{t+1}, 0x3f80
s_movk_i32 s4, {CAP}
""")
    for i in range(1, NR):
        a(f"s_add_u32 s{10+i}, s{10+i}, s10")
    for i in range(NR):
        p = RC + 4*i + 3
        a(f"""
v_add_u32 v{p}, s{10+i}, v{p}
v_cmp_gt_u32 vcc, s4, v{p}
s_and_b64 s[{56+2*i}:{57+2*i}], vcc, s[{56+2*i}:{57+2*i}]
v_mul_u32_u24 v{t+2+i}, 48, v{p}
v_lshlrev_b32 v{p}, 2, v{p}
""")
    a(f"""
s_waitcnt vmcnt({NR})
ds_read_b64_tr_b16 {vr(B2,2)}, v{vXA}
ds_read_b64_tr_b16 {vr(B2+2,2)}, v{vXA} offset:256
ds_read_b64_tr_b16 {vr(B2+4,2)}, v{vXA} offset:1024
s_mov_b32 s4, 0x{NLOG2E:08x}
""")
    for k in range(4):
        a(f"v_lshlrev_b32 v{E+k}, 16, v{W3R+k}\nv_mul_f32 v{E+k}, s4, v{E+k}")
    a(f"""
v_cvt_pk_bf16_f32 v{E+4}, v{E}, v{E+1}
v_cvt_pk_bf16_f32 v{E+5}, v{E+2}, v{E+3}
v_lshlrev_b32 v{E+6}, 16, v{E+4}
v_and_b32 v{E+7}, 0xffff0000, v{E+4}
v_lshlrev_b32 v{E+8}, 16, v{E+5}
v_and_b32 v{E+9}, 0xffff0000, v{E+5}
v_sub_f32 v{E}, v{E}, v{E+6}
v_sub_f32 v{E+1}, v{E+1}, v{E+7}
v_sub_f32 v{E+2}, v{E+2}, v{E+8}
v_sub_f32 v{E+3}, v{E+3}, v{E+9}
v_cmp_eq_u32 vcc, 0, v{vH}
v_cvt_pk_bf16_f32 v{E+6}, v{E}, v{E+1}
v_cvt_pk_bf16_f32 v{E+7}, v{E+2}, v{E+3}
v_cndmask_b32 v{B2+6}, v{E+6}, v{E+4}, vcc
v_cndmask_b32 v{B2+7}, v{E+7}, v{E+5}, vcc
""")
    a(f"""
s_waitcnt lgkmcnt(0)
v_cndmask_b32 v{B2+4}, 0, v{B2+4}, vcc
v_cndmask_b32 v{B2+5}, 0, v{B2+5}, vcc
v_mov_b32 v{E+1}, v{vGC0}
v_mov_b32 v{E+3}, v{vGC0}
v_mov_b32 v{E+5}, v{vGC0}
v_mov_b32 v{E+7}, v{vGC0}
@B6
""")
    for i in range(NR):
        p = RC + 4*i + 3
        a(f"s_mov_b64 exec, s[{56+2*i}:{57+2*i}]")
        if i >= 2: a(f"s_cbranch_execz K2_RB_DONE")
        a(f"""
v_add_u32 v{vCUR}, 4, v{vCUR}
s_waitcnt vmcnt({NR-1-i})
v_lshrrev_b32 v{t}, 8, v{RC+4*i+2}
ds_write_b32 v{p}, v{t} offset:{IDX}
v_and_b32 v{RC+4*i+2}, 0xff, v{RC+4*i+2}
v_add_u32 v{RC+4*i+2}, v{RC+4*i+2}, v{t+2+i}
ds_write_b64 v{t+2+i}, {vr(RC+4*i,2)} offset:{RB+40}
ds_write_b16 v{RC+4*i+2}, v{t+1} offset:{RB}
""")
    IR = T1
    a(f"""
K2_RB_DONE:
s_mov_b64 exec, -1
v_cmp_lt_u32 vcc, v{vCUR}, v{vEND}
s_mov_b64 exec, vcc
ds_write_b32 v{vCN}, v{t+1} offset:4
s_mov_b64 exec, -1
@B7
@A4
s_waitcnt lgkmcnt(0)
s_barrier
@A5
""")
    a(f"""
ds_read_b32 v{vG0}, v{vIX}
ds_read_b32 v{vG1}, v{vIX} offset:64
ds_read_b64 {vr(IR+10,2)}, v{vCN}
ds_read_b32 v{E}, v{vIX} offset:128
ds_read_b32 v{E+2}, v{vIX} offset:192
ds_read_b128 {vr(AR,4)}, v{vRA0}
ds_read_b128 {vr(AR+4,4)}, v{vRA1}
ds_read_b32 v{E+4}, v{vIX} offset:256
ds_read_b32 v{E+6}, v{vIX} offset:320
s_add_u32 m0, s53, 4096
s_waitcnt lgkmcnt(8)
buffer_load_dwordx4 v[{vG0}:{vGC0}], s[68:71], 0 idxen offen lds
s_add_u32 m0, s53, 5120
s_waitcnt lgkmcnt(7)
buffer_load_dwordx4 v[{vG1}:{vGC1}], s[68:71], 0 idxen offen lds
s_waitcnt lgkmcnt(6)
v_readfirstlane_b32 s48, v{IR+10}
v_readfirstlane_b32 s51, v{IR+11}
s_min_u32 s48, s48, {CAP}
s_max_u32 s48, s48, 1
s_add_u32 s4, s48, 31
s_lshr_b32 s48, s4, 5
s_sub_u32 s49, {NT}, s48
s_bfe_u32 s50, s4, 0x10004
s_xor_b32 s50, s50, 1
s_and_b32 s4, s49, 1
s_lshl_b32 s4, s4, 11
s_add_u32 s52, s53, s4
s_xor_b32 m0, s52, 0x800
s_waitcnt lgkmcnt(5)
buffer_load_dwordx4 v[{E}:{E+1}], s[68:71], 0 idxen offen lds
s_xor_b32 m0, s52, 0xc00
s_waitcnt lgkmcnt(4)
buffer_load_dwordx4 v[{E+2}:{E+3}], s[68:71], 0 idxen offen lds
s_mul_i32 s4, s49, 1536
s_lshl_b32 s6, s49, 7
s_waitcnt lgkmcnt(2)
""")
    mfma(a, T0, AR, B2)
    mfma(a, T0, AR+4, B2+4, T0)
    a(f"""
v_subrev_u32 v{vRA0}, s4, v{vRA0}
v_subrev_u32 v{vRA1}, s4, v{vRA1}
v_subrev_u32 v{vTR}, s4, v{vTR}
v_subrev_u32 v{vIX}, s6, v{vIX}
s_mov_b32 m0, s52
@B8
s_waitcnt vmcnt(2) lgkmcnt(0)
@B9
ds_read_b128 {vr(AP,4)}, v{vPA0} offset:4096
ds_read_b128 {vr(AP+4,4)}, v{vPA1} offset:4096
buffer_load_dwordx4 v[{E+4}:{E+5}], s[68:71], 0 idxen offen lds
s_add_u32 m0, s52, 0x400
s_cmp_lt_u32 s49, {NT-DP+1}
buffer_load_dwordx4 v[{E+6}:{E+7}], s[68:71], 0 idxen offen lds
s_cbranch_scc1 K2_NWU
""")
    wu_loads(a)
    a("K2_NWU:\ns_waitcnt lgkmcnt(0)")
    if len(PRIO) == 4:
        a("s_cmpk_ge_u32 s2, 256\ns_cbranch_scc1 K2_MB")
        k2_main(a, "A", PRIO[0:2])
        a("s_branch K2_DONE\nK2_MB:")
        k2_main(a, "B", PRIO[2:4])
    else:
        k2_main(a, "A", PRIO)
    a("K2_DONE:\n@A7")
    a(f"""
s_waitcnt vmcnt(0)
s_cmp_eq_u32 s51, 0
s_cbranch_scc1 K2_EPI
s_barrier
""")
    k2_addr_init(a)
    k2_zero(a)
    a(f"""
s_waitcnt lgkmcnt(0)
s_barrier
s_branch K2_ROUND
K2_EPI:
@A8
""")
    a(f"s_mov_b32 s6, 0x{NLN2:08x}")
    for r in range(8):
        a(f"v_lshlrev_b32 v{XF+2*r}, 16, v{UB+r}\nv_and_b32 v{XF+2*r+1}, 0xffff0000, v{UB+r}")
    for r in range(16):
        a(f"v_mul_f32 v{AGG+r}, s6, v{AGG+r}")
    for r in range(8):
        a(f"v_cvt_pk_bf16_f32 v{M+r}, v{AGG+2*r}, v{AGG+2*r+1}")
    a(f"""
v_add_u32 v232, s53, v{vWF}
ds_write_b128 v232, {vr(M,4)}
ds_write_b128 v232, {vr(M+4,4)} offset:1024
s_waitcnt lgkmcnt(0)
s_barrier
@A9
""")
    for s in range(8):
        a(f"ds_read_b128 {vr(T1+4*s,4)}, v{vWF} offset:{8192*(s>>1) + 1024*(s&1)}")
    a(f"""
v_lshlrev_b32 v232, 1, v{vH}
v_xor_b32 v232, v232, v252
v_lshlrev_b32 v232, 4, v232
v_lshl_or_b32 v232, v248, 6, v232
v_add_u32 v232, s53, v232
v_xor_b32 v233, 16, v232
v_lshrrev_b32 v228, 2, v1
v_bfe_u32 v229, v1, 4, 2
v_xor_b32 v229, v229, v253
v_lshlrev_b32 v229, 4, v229
v_lshl_or_b32 v229, v228, 6, v229
v_add_u32 v229, s53, v229
v_lshlrev_b32 v230, 4, v253
v_lshl_or_b32 v230, v228, 8, v230
v_add_u32 v230, s5, v230
v_add_u32 v231, 0x1000, v230
v_add_u32 v234, 16, v228
v_cmp_gt_u32 s[56:57], s46, v228
v_cmp_gt_u32 s[58:59], s46, v234
s_mov_b32 s6, 0x{NLOG2E:08x}
""")
    for s in range(8):
        a(f"s_waitcnt lgkmcnt({7-s})")
        mfma(a, XF, WU+4*s, T1+4*s, XF)
    a("s_nop 7\ns_nop 7")
    for r in range(16):
        a(f"v_mul_f32 v{E+r}, s6, v{XF+r}")
    for r in range(16):
        a(f"v_exp_f32 v{E+r}, v{E+r}")
    for r in range(8):
        a(f"v_pk_add_f32 {vr(E+2*r,2)}, {vr(E+2*r,2)}, 1.0 op_sel_hi:[1,0]")
    for r in range(16):
        a(f"v_rcp_f32 v{E+r}, v{E+r}")
    for r in range(8):
        a(f"v_pk_mul_f32 {vr(E+2*r,2)}, {vr(E+2*r,2)}, {vr(XF+2*r,2)}")
    for r in range(8):
        a(f"v_cvt_pk_bf16_f32 v{M+r}, v{E+2*r}, v{E+2*r+1}")
    a(f"""
ds_write_b128 v232, {vr(M,4)} offset:2048
ds_write_b128 v233, {vr(M+4,4)} offset:2048
s_waitcnt lgkmcnt(0)
ds_read_b128 {vr(AP,4)}, v229 offset:2048
ds_read_b128 {vr(AP+4,4)}, v229 offset:3072
s_mov_b64 exec, s[56:57]
s_waitcnt lgkmcnt(1)
buffer_store_dwordx4 {vr(AP,4)}, v230, s[36:39], 0 offen{K2SC}
s_mov_b64 exec, s[58:59]
s_waitcnt lgkmcnt(0)
buffer_store_dwordx4 {vr(AP+4,4)}, v231, s[36:39], 0 offen{K2SC}
@P1
K2_END:
s_endpgm
""")

def desc(name, vg):
    return f""".amdhsa_kernel {name}
  .amdhsa_next_free_vgpr {vg}
  .amdhsa_next_free_sgpr 96
  .amdhsa_accum_offset {vg}
  .amdhsa_group_segment_fixed_size 0
  .amdhsa_kernarg_size 72
  .amdhsa_user_sgpr_count 2
  .amdhsa_user_sgpr_kernarg_segment_ptr 1
  .amdhsa_system_sgpr_workgroup_id_x 1
.end_amdhsa_kernel
"""

def main(out):
    ref = open(f"cdna_kernels/{NAME}.s.ref").read().split("\n")
    hdr = [l for l in ref if l.startswith(";") and "@launch" not in l and "Override" not in l and "grid=ceil" not in l]
    k1n, k2n = "mpnn_prep_kernel", f"{NAME}_kernel"
    t = "\n".join(hdr) + "\n"
    t += f"; @launch kernel={k1n} grid=({K1_GRID},1,1) block=(640,1,1) lds={K1_LDS}\n"
    t += f"; @launch kernel={k2n} grid=(512,1,1) block=(256,1,1) lds={K2_LDS}\n"
    t += '.amdgcn_target "amdgcn-amd-amdhsa--gfx950"\n.text\n'
    for n, f in ((k1n, k1), (k2n, k2)):
        a = A(); f(a)
        t += f".globl {n}\n.p2align 8\n.type {n},@function\n{n}:\n" + a.text()
    t += '.section .rodata,"a"\n.p2align 6\n' + desc(k1n, 160) + ".p2align 6\n" + desc(k2n, 256)
    open(out, "w").write(t)

if __name__ == "__main__":
    main(sys.argv[1] if len(sys.argv) > 1 else f"cdna_kernels/{NAME}.s")
```

```python
import sys, struct, os
sys.path.insert(0, os.path.dirname(os.path.abspath(__file__)))
import haz
VERB = bool(os.environ.get('VERB'))

NAME = "gather_scatter__mpnn_edge_mlp__graph"
def f2u(x): return struct.unpack("<I", struct.pack("<f", x))[0]
NLOG2E = f2u(-1.4426950408889634)
NLN2 = f2u(-0.6931471805599453)

PW = 4096
PSTR = 0x280000
QW = PW + PSTR
UW = PW + 2 * PSTR
REC = 0x780000
TAB = 0x960000
WF = 0x980000
WS_SIZE = 0x990000
K1SC = os.environ.get("K1SC", " sc0 sc1")
K2SC = os.environ.get("K2SC", " sc0 sc1")
K1_LDS = 90112
ROTX = int(os.environ.get("ROTX", "16384"))
ROTW = int(os.environ.get("ROTW", "128"))
NCH = 64
CHE = 2500
K1_GRID = 256
CPF = int(os.environ.get("CPF", "0"))
DP = 3
NT = 13
def prspec(x):
    if ":" in x:
        h, l = x.split(":"); return list(zip(h, l))
    return [tuple(x)] * 13
PRIO = [prspec(x) for x in os.environ.get("PRIO", "10/11").split("/")]
HALF = int(os.environ.get("HALF", "1"))

class A:
    def __init__(s): s.l = []
    def __call__(s, t):
        for x in t.strip("\n").split("\n"):
            if x.strip().startswith("@"):
                x = x.strip()
                if x[1] in "SR": stamp(s, int(x[2:]), x[1] == "R")
                elif x[1] in "AB":
                    if PROFM == x[1]: stamp(s, int(x[2:]))
                else: prof_out(s, int(x[2:]), 32)
                continue
            s.l.append("    " + x.strip() if not x.strip().endswith(":") else x.strip())
    def text(s): return "\n".join(haz.pad(s.l, VERB)) + "\n"

def srd(a, d, b, n):
    a(f"s_mov_b32 s{d}, s{b}\ns_mov_b32 s{d+1}, s{b+1}\ns_mov_b32 s{d+2}, {n}\ns_mov_b32 s{d+3}, 0x00020000")

PROF = bool(os.environ.get('PROF'))
PROFB = 0x1000000
PROFM = os.environ.get('PROF', '')
def stamp(a, i, real=False):
    if PROF:
        a(f"s_{'memrealtime' if real else 'memtime'} s[{72+2*i}:{73+2*i}]")
def prof_out(a, kid, wsr):
    if not PROF: return
    if kid == 0: stamp(a, 9)
    a("s_waitcnt vmcnt(0)")
    stamp(a, 10); stamp(a, 11, True)
    a(f"""
s_mov_b64 exec, 1
s_waitcnt lgkmcnt(0)
v_lshrrev_b32 v1, 6, v0
v_lshlrev_b32 v1, 6, v1
s_lshl_b32 s3, s2, 10
s_add_u32 s3, s3, {PROFB + kid*0x100000}
s_mov_b32 s{wsr+2}, 0x2000000
""")
    for j in range(3):
        for u in range(4):
            a(f"v_mov_b32 v{4+u}, s{72+2*(4*j+u)}")
        a(f"buffer_store_dwordx4 v[4:7], v1, s[{wsr}:{wsr+3}], s3 offen offset:{16*j}\ns_nop 1")
    a("s_getreg_b32 s4, hwreg(HW_REG_HW_ID)\ns_getreg_b32 s5, hwreg(HW_REG_XCC_ID)\nv_mov_b32 v4, s4\nv_mov_b32 v5, s5\nv_mov_b32 v6, s48\nv_mov_b32 v7, 1")
    a(f"buffer_store_dwordx4 v[4:7], v1, s[{wsr}:{wsr+3}], s3 offen offset:48")

def vr(b, n): return f"v[{b}:{b+n-1}]"

def k1(a):
    XA, XB, WA, C0, C1, PK, ST = 64, 96, 32, 128, 144, 16, 24
    a(f"""
s_cmp_ge_u32 s2, {K1_GRID}
s_cbranch_scc1 K1_END
@R0
@S1
s_load_dwordx16 s[8:23], s[0:1], 0
s_load_dwordx2 s[24:25], s[0:1], 64
""")
    if CPF & 1:
        a(f"""
s_getpc_b64 s[4:5]
K1_PC:
v_subrev_u32 v1, 512, v0
v_lshlrev_b32 v1, 7, v1
s_mov_b32 s6, K2_END-K1_PC
v_cmp_gt_u32 vcc, s6, v1
s_cbranch_vccz K1_PF2
s_mov_b64 exec, vcc
global_load_dword v70, v1, s[4:5]
s_mov_b64 exec, -1
K1_PF2:
""")
    a(f"""
s_cmp_lt_u32 s2, {NCH}
s_cbranch_scc1 K1_SORT
""")
    a(f"""
v_lshrrev_b32 v2, 6, v0
v_and_b32 v1, 63, v0
s_lshr_b32 s44, s2, 6
v_readfirstlane_b32 s27, v2
s_and_b32 s3, s2, 63
s_cmp_ge_u32 s27, 8
s_cbranch_scc1 {"K1_PF" if CPF & 1 else "K1_END"}
v_lshrrev_b32 v2, 4, v1
v_and_b32 v3, 15, v1
v_lshlrev_b32 v4, 2, v2
v_xor_b32 v4, v3, v4
v_lshlrev_b32 v4, 4, v4
v_lshl_or_b32 v4, v2, 8, v4
s_lshl_b32 s4, s27, 2
v_add_u32 v5, s4, v2
v_and_b32 v6, 15, v5
v_xor_b32 v6, v3, v6
v_lshlrev_b32 v6, 4, v6
v_lshl_or_b32 v6, v5, 8, v6
s_mul_i32 s5, s3, 40960
s_lshl_b32 s6, s27, 12
s_cmp_eq_u32 s44, 2
s_cselect_b32 s49, 0x8000, 0
s_mov_b32 s47, 3
s_movk_i32 s48, 1024
s_cmp_lg_u32 s3, 63
s_cbranch_scc1 K1_G1
s_cmp_lg_u32 s44, 3
s_cbranch_scc1 K1_END
s_mov_b32 s47, 2
s_movk_i32 s48, 0x800
s_mov_b32 s49, 0x8000
K1_G1:
s_add_u32 s49, s49, s6
s_and_b32 s26, s27, 3
s_mov_b32 s38, 65536
s_mov_b32 s39, 0x00020000
s_mov_b32 s30, 2560000
s_mov_b32 s31, 0x00020000
s_lshl_b32 s7, s27, 10
s_mul_i32 s4, s44, {ROTX}
""")
    for b in range(5):
        a(f"""
s_add_u32 s{52+b}, s4, {8192*b}
s_cmp_ge_u32 s{52+b}, 40960
s_cselect_b32 s57, 40960, 0
s_sub_u32 s{52+b}, s{52+b}, s57
s_cmp_ge_u32 s{52+b}, 40960
s_cselect_b32 s57, 40960, 0
s_sub_u32 s{52+b}, s{52+b}, s57
s_add_u32 s{52+b}, s{52+b}, s5
""")
    a(f"s_mul_i32 s4, s3, {ROTW}")
    for i in range(4):
        a(f"s_add_u32 s{60+i}, s4, {1024*i}\ns_and_b32 s{60+i}, s{60+i}, 0xc00")
    a(f"""
s_add_u32 m0, s7, 32768
s_cmp_eq_u32 s44, 3
s_waitcnt lgkmcnt(0)
@S2
s_mov_b32 s28, s8
s_mov_b32 s29, s9
buffer_load_dwordx4 v6, s[28:31], s52 offen lds
s_cselect_b32 s36, s18, s16
s_cselect_b32 s37, s19, s17
s_add_u32 m0, s7, {32768 + 8192}
s_nop 0
buffer_load_dwordx4 v6, s[28:31], s53 offen lds
""")
    for i in range(4):
        a(f"""
s_add_u32 m0, s6, s{60+i}
s_add_u32 s4, s49, s{60+i}
buffer_load_dwordx4 v4, s[36:39], s4 offen lds
""")
    for b in range(2, 5):
        a(f"""
s_add_u32 m0, s7, {32768 + 8192*b}
s_nop 0
buffer_load_dwordx4 v6, s[28:31], s{52+b} offen lds
""")
    srd(a, 32, 24, WS_SIZE)
    a(f"""
v_and_b32 v8, 1, v1
v_lshlrev_b32 v8, 4, v8
v_bfe_u32 v9, v1, 1, 1
v_lshl_or_b32 v8, v9, 2, v8
v_bfe_u32 v9, v1, 4, 1
v_lshl_or_b32 v8, v9, 3, v8
v_bfe_u32 v10, v1, 2, 2
v_lshrrev_b32 v11, 5, v1
v_lshlrev_b32 v12, s47, v11
v_add_u32 v12, v12, v10
v_lshrrev_b32 v9, 3, v8
s_lshl_b32 s4, s26, 2
v_add_u32 v9, s4, v9
v_lshlrev_b32 v10, 2, v10
v_xor_b32 v9, v9, v10
v_lshlrev_b32 v9, 4, v9
v_lshl_or_b32 v9, v12, 8, v9
v_and_b32 v8, 4, v8
v_lshl_or_b32 v8, v8, 1, v9
v_add_u32 v9, s48, v8
v_and_b32 v12, 31, v1
v_xor_b32 v13, v11, v3
v_lshlrev_b32 v13, 4, v13
v_lshl_or_b32 v13, v12, 8, v13
s_lshr_b32 s45, s27, 2
s_lshl_b32 s4, s45, 13
s_add_u32 s4, s4, 32768
v_add_u32 v13, s4, v13
""")
    for s in range(8):
        a(f"v_xor_b32 v{ST+s}, {32*s}, v13")
    a(f"""
s_lshl_b32 s4, s27, 11
s_add_u32 s4, s4, 73728
v_bfe_u32 v14, v1, 2, 2
v_lshlrev_b32 v15, 1, v11
v_xor_b32 v14, v14, v15
v_lshlrev_b32 v14, 4, v14
v_lshl_or_b32 v14, v12, 6, v14
v_add_u32 v14, s4, v14
v_xor_b32 v15, 16, v14
v_and_b32 v2, 3, v2
v_and_b32 v3, 3, v1
v_xor_b32 v2, v2, v3
v_lshlrev_b32 v2, 4, v2
v_lshrrev_b32 v5, 2, v1
v_lshl_or_b32 v2, v5, 6, v2
v_add_u32 v2, s4, v2
v_lshlrev_b32 v3, 4, v3
v_lshl_or_b32 v3, v5, 8, v3
v_add_u32 v7, 0x1000, v3
s_lshl_b32 s4, s26, 6
s_mul_i32 s6, s44, {PSTR}
s_add_u32 s4, s4, s6
s_add_u32 s4, s4, {(PW - PSTR) & 0xffffffff}
s_cmp_eq_u32 s45, 0
s_cselect_b32 s52, s52, s53
s_cselect_b32 s53, s54, s55
s_add_u32 s52, s52, s4
s_add_u32 s53, s53, s4
s_add_u32 s54, s56, s4
s_cmp_eq_u32 s44, 3
s_cselect_b32 s6, 1.0, 0x{NLOG2E:08x}
s_waitcnt vmcnt(3)
@S3
s_barrier
@S4
""")
    def xrd(X, blk, s): return f"ds_read_b128 {vr(X+4*s,4)}, v{ST+s} offset:{16384*blk}"
    def post(C):
        l = [f"v_mul_f32 v{C+r}, s6, v{C+r}" for r in range(16)]
        l += [f"v_cvt_pk_bf16_f32 v{PK+r}, v{C+2*r}, v{C+2*r+1}" for r in range(8)]
        l += [f"ds_write_b128 v14, {vr(PK,4)}", f"ds_write_b128 v15, {vr(PK+4,4)}",
              f"ds_read_b128 {vr(C,4)}, v2", f"ds_read_b128 {vr(C+4,4)}, v2 offset:1024"]
        return l
    def store(C, so):
        a(f"""
s_waitcnt lgkmcnt(1)
buffer_store_dwordx4 {vr(C,4)}, v3, s[32:35], s{so} offen{K1SC}
s_waitcnt lgkmcnt(0)
buffer_store_dwordx4 {vr(C+4,4)}, v7, s[32:35], s{so} offen{K1SC}
""")
    def rd3(s):
        a(f"ds_read_b64_tr_b16 v[{WA+4*s}:{WA+1+4*s}], v8 offset:{4096*s}")
        a(f"ds_read_b64_tr_b16 v[{WA+2+4*s}:{WA+3+4*s}], v9 offset:{4096*s}")
        a(xrd(XA, 0, s))
    for s in range(4): rd3(s)
    for s in range(8):
        if s < 4: rd3(s + 4)
        a(f"s_waitcnt lgkmcnt({12 if s < 4 else 3*(7-s)})")
        mfma(a, C0, WA+4*s, XA+4*s, None if s == 0 else C0)
    a(f"""
s_cmp_eq_u32 s3, 63
s_cbranch_scc1 K1_PREP
s_waitcnt vmcnt(0)
@S5
s_barrier
@S6
""")
    for s in range(8): a(xrd(XB, 1, s))
    fill = post(C0)
    pre = fill[:8]; fill = fill[8:] + [xrd(XA, 2, s) for s in range(8)]
    for x in pre: a(x)
    cuts = [4, 8, 12, 16, 20, 24, 28, 28]
    for s in range(8):
        if s < 4: a(f"s_waitcnt lgkmcnt({7-s if s < 3 else 0})")
        mfma(a, C1, WA+4*s, XB+4*s, None if s == 0 else C1)
        for x in fill[(cuts[s-1] if s else 0):cuts[s]]: a(x)
    a("@S7")
    store(C0, 52)
    a("s_cmp_eq_u32 s45, 0\ns_cbranch_scc0 K1_G2")
    fill = post(C1)
    CX = XB
    cuts = [0, 4, 9, 14, 19, 24, 28, 28]
    for s in range(8):
        mfma(a, CX, WA+4*s, XA+4*s, None if s == 0 else CX)
        for x in fill[(cuts[s-1] if s else 0):cuts[s]]: a(x)
    store(C1, 53)
    for x in post(CX): a(x)
    store(CX, 54)
    a("@P0\ns_endpgm\nK1_G2:\ns_nop 5")
    for x in post(C1): a(x)
    store(C1, 53)
    a(f"""
@P0
s_endpgm
K1_PREP:
s_waitcnt vmcnt(0)
s_cmp_ge_u32 s27, 4
s_cbranch_scc1 K1_END
s_lshl_b32 s6, s26, 13
s_add_u32 s4, s6, {WF}
v_lshlrev_b32 v2, 4, v1
v_add_u32 v2, s4, v2
v_add_u32 v3, 0x1000, v2
s_waitcnt lgkmcnt(0)
""")
    for s in range(8):
        a(f"buffer_store_dwordx4 {vr(WA+4*s,4)}, v{2+(s>>2)}, s[32:35], 0 offen offset:{1024*(s&3)}{K1SC}")
    a("s_endpgm")
    IMG = 8192
    a(f"""
K1_SORT:
s_mul_i32 s3, s2, {CHE*4}
v_lshlrev_b32 v28, 4, v0
v_add_u32 v1, s3, v28
v_lshlrev_b32 v2, 1, v1
s_mov_b32 s30, 640000
s_mov_b32 s31, 0x00020000
s_mov_b32 s38, 640000
s_mov_b32 s39, 0x00020000
s_mov_b32 s42, 1280000
s_mov_b32 s43, 0x00020000
s_movk_i32 s4, 625
v_cmp_gt_u32 s[26:27], s4, v0
v_lshlrev_b32 v3, 2, v0
v_mov_b32 v30, 0
v_mov_b32 v31, 1
s_waitcnt lgkmcnt(0)
@S2
s_mov_b32 s28, s14
s_mov_b32 s29, s15
buffer_load_dwordx4 v[4:7], v1, s[28:31], 0 offen
s_mov_b32 s36, s12
s_mov_b32 s37, s13
s_mov_b32 s40, s10
s_mov_b32 s41, s11
ds_write_b32 v3, v30
s_waitcnt lgkmcnt(0)
s_barrier
buffer_load_dwordx4 v[8:11], v1, s[36:39], 0 offen
buffer_load_dwordx4 v[12:15], v2, s[40:43], 0 offen
buffer_load_dwordx4 v[24:27], v2, s[40:43], 0 offen offset:16
s_movk_i32 s5, 3355
s_mov_b32 s6, 1280180
v_and_b32 v3, 63, v0
v_lshlrev_b32 v3, 5, v3
""")
    srd(a, 32, 24, WS_SIZE)
    a("s_mov_b64 exec, s[26:27]\ns_waitcnt vmcnt(3)\n@S3")
    for i in range(4):
        a(f"""
v_mul_u32_u24 v{4+i}, s5, v{4+i}
v_lshrrev_b32 v{32+i}, 16, v{4+i}
v_lshlrev_b32 v{32+i}, 2, v{32+i}
ds_add_rtn_u32 v{36+i}, v{32+i}, v31
""")
    for i in range(4):
        a(f"""
v_and_b32 v{4+i}, 0xffff, v{4+i}
v_mul_hi_u32_u24 v{4+i}, s6, v{4+i}
v_lshlrev_b32 v{4+i}, 1, v{4+i}
""")
    a(f"""
v_cmp_gt_u32 vcc, 64, v0
s_lshl_b32 s7, s2, 11
s_add_u32 s7, s7, {TAB}
s_waitcnt lgkmcnt(0)
@S4
s_barrier
s_cbranch_vccz K1_S2
ds_read_b128 v[48:51], v3
ds_read_b128 v[52:55], v3 offset:16
s_waitcnt lgkmcnt(0)
""")
    for j in range(1, 8):
        a(f"v_add_u32 v{48+j}, v{48+j}, v{47+j}")
    a(f"""
v_mov_b32 v56, v55
s_nop 1
v_add_u32_dpp v56, v56, v56 row_shr:1 row_mask:0xf bank_mask:0xf bound_ctrl:0
s_nop 1
v_add_u32_dpp v56, v56, v56 row_shr:2 row_mask:0xf bank_mask:0xf bound_ctrl:0
s_nop 1
v_add_u32_dpp v56, v56, v56 row_shr:4 row_mask:0xf bank_mask:0xf bound_ctrl:0
s_nop 1
v_add_u32_dpp v56, v56, v56 row_shr:8 row_mask:0xf bank_mask:0xf bound_ctrl:0
s_nop 1
v_add_u32_dpp v56, v56, v56 row_bcast:15 row_mask:0xa bank_mask:0xf
s_nop 1
v_add_u32_dpp v56, v56, v56 row_bcast:31 row_mask:0xc bank_mask:0xf
v_sub_u32 v56, v56, v55
""")
    for j in range(1, 8):
        a(f"v_add_u32 v{56+j}, v56, v{47+j}")
    a(f"""
v_add_u32 v64, v56, v55
ds_write_b128 v3, v[56:59] offset:4096
ds_write_b128 v3, v[60:63] offset:4112
""")
    for j in range(8):
        a(f"v_lshl_or_b32 v{48+j}, v{57+j}, 16, v{56+j}")
    a(f"""
s_waitcnt lgkmcnt(0)
K1_S2:
s_barrier
@S5
ds_read_b32 v40, v32 offset:4096
ds_read_b32 v41, v33 offset:4096
ds_read_b32 v42, v34 offset:4096
ds_read_b32 v43, v35 offset:4096
s_mul_i32 s3, s2, {CHE*12}
s_add_u32 s3, s3, {REC}
s_movk_i32 s4, {IMG}
s_waitcnt vmcnt(2)
@S6
""")
    for i in range(4):
        a(f"v_lshl_or_b32 v{4+i}, v{8+i}, 8, v{4+i}")
    er = [12, 14, 24, 26]
    for i in range(4):
        a(f"""
s_waitcnt lgkmcnt({3+i})
v_add_u32 v{40+i}, v{40+i}, v{36+i}
v_mad_u32_u24 v{40+i}, v{40+i}, 12, s4
""")
        if i in (0, 2): a(f"s_waitcnt vmcnt({1 - i//2})")
        a(f"""
ds_write2_b32 v{40+i}, v{er[i]}, v{er[i]+1} offset1:1
ds_write_b32 v{40+i}, v{4+i} offset:8
""")
    a(f"""
s_mov_b64 exec, -1
s_cbranch_vccz K1_S3
buffer_store_dwordx4 v[48:51], v3, s[32:35], s7 offen{K1SC}
buffer_store_dwordx4 v[52:55], v3, s[32:35], s7 offen offset:16{K1SC}
K1_S3:
s_movk_i32 s4, {1875 - 1280}
v_cmp_gt_u32 vcc, s4, v0
s_add_u32 s5, s3, 10240
s_add_u32 s6, s3, 20480
s_waitcnt lgkmcnt(0)
@S7
s_barrier
@S8
ds_read_b128 v[4:7], v28 offset:{IMG}
ds_read_b128 v[8:11], v28 offset:{IMG+10240}
ds_read_b128 v[12:15], v28 offset:{IMG+20480}
s_waitcnt lgkmcnt(2)
buffer_store_dwordx4 v[4:7], v28, s[32:35], s3 offen{K1SC}
s_waitcnt lgkmcnt(1)
buffer_store_dwordx4 v[8:11], v28, s[32:35], s5 offen{K1SC}
s_mov_b64 exec, vcc
s_waitcnt lgkmcnt(0)
buffer_store_dwordx4 v[12:15], v28, s[32:35], s6 offen{K1SC}
@P0
K1_END:
s_endpgm
""")
    a("K1_PF:\ns_waitcnt vmcnt(0)\ns_endpgm")

RING = 0; RB = 32768; IDX = RB + 20480; NZ = 6; XT = RB + 24576; CNT = XT + 8192; K2_LDS = CNT + 16
CAP = 416
T0, T1, E, AGG, M, AP, AR, OH, ID, B2, XF, WU, RC = 16, 32, 48, 64, 80, 88, 96, 104, 112, 120, 128, 160, 224
vPA0, vPA1, vRA0, vRA1, vTR, vIX, vG0, vGC0, vCUR, vEND, vWF, vH, vG1, vGC1 = 2, 3, 4, 5, 6, 7, 8, 9, 10, 11, 12, 13, 14, 15
W3R = 244
vN, vRB, vZ, vCN, vQ2, vQ, vOOB, vXA = 248, 249, 250, 251, 252, 253, 254, 255
NR = 5
IDXM = os.environ.get("IDXM", "0xffffff00")
GPRE = int(os.environ.get("GPRE", "2"))
PF = int(os.environ.get("PF", "0"))

def mfma(a, d, x, y, c=None):
    cc = "0" if c is None else vr(c, 16)
    a(f"v_mfma_f32_32x32x16_bf16 {vr(d,16)}, {vr(x,4)}, {vr(y,4)}, {cc}")

def wu_loads(a):
    for s in range(8):
        so = "s54" if s < 4 else "s55"
        a(f"buffer_load_dwordx4 {vr(WU+4*s,4)}, v{vWF}, s[32:35], {so} offen offset:{1024*(s&3)}")
    a(f"buffer_load_dwordx4 {vr(XF+16,4)}, v{XF+24}, s[32:35], s9 offen")
    a(f"buffer_load_dwordx4 {vr(XF+20,4)}, v{XF+24}, s[32:35], s9 offen offset:16")

def k2_tile(a, p, pr, nreg=16):
    Tc, Tn = (T0, T1) if p % 2 == 0 else (T1, T0)
    last = p == NT - 1
    gi = p + DP < NT
    hi, lo = pr[p]
    if not last:
        a(f"s_waitcnt vmcnt({2 if p + DP <= NT else 10}) lgkmcnt(0)")
        a(f"""
ds_read_b128 {vr(AP,4)}, v{vPA0} offset:{2048*((p+1)&1)}
ds_read_b128 {vr(AP+4,4)}, v{vPA1} offset:{2048*((p+1)&1)}
ds_read_b128 {vr(AR,4)}, v{vRA0} offset:{1536*(p+1)}
ds_read_b128 {vr(AR+4,4)}, v{vRA1} offset:{1536*(p+1)}
""")
    else:
        a("s_waitcnt lgkmcnt(0)")
    if gi:
        a(f"""
ds_read_b32 v{vG0}, v{vIX} offset:{128*(p+DP)}
ds_read_b32 v{vG1}, v{vIX} offset:{128*(p+DP)+64}
s_add_u32 m0, s53, {2048*((p+DP)&1)}
""")
    a(f"s_setprio {hi}")
    sp = (lambda x: a(f"s_setprio {x}")) if hi != lo else (lambda x: None)
    for r in range(nreg):
        if r == 0: mfma(a, AGG, M, OH, AGG)
        if r == 3: mfma(a, AGG, M+4, OH+4, AGG)
        a(f"v_exp_f32 v{E+r}, v{Tc+r}")
    sp(lo)
    for r in range(nreg // 2):
        a(f"v_pk_add_f32 {vr(E+2*r,2)}, {vr(E+2*r,2)}, 1.0 op_sel_hi:[1,0]")
    if not last: a("s_waitcnt lgkmcnt(0)")
    trs = []
    for m in range(nreg // 8):
        trs.append(f"ds_read_b64_tr_b16 {vr(OH+4*m,2)}, v{vTR} offset:{1536*p + 48*16*m}")
        trs.append(f"ds_read_b64_tr_b16 {vr(OH+4*m+2,2)}, v{vTR} offset:{1536*p + 48*16*m + 48*8}")
    if gi:
        a(f"buffer_load_dwordx4 v[{vG0}:{vGC0}], s[68:71], 0 idxen offen lds")
        a(f"s_add_u32 m0, s53, {2048*((p+DP)&1) + 1024}")
        a(trs.pop(0))
        a(f"buffer_load_dwordx4 v[{vG1}:{vGC1}], s[68:71], 0 idxen offen lds")
    for x in trs: a(x)
    if p + DP == NT: wu_loads(a)
    sp(hi)
    for r in range(nreg):
        if not last:
            if r == 0: mfma(a, Tn, AP, ID)
            if r == 3: mfma(a, Tn, AP+4, ID+4, Tn)
            if r == 6: mfma(a, Tn, AR, B2, Tn)
            if r == 9: mfma(a, Tn, AR+4, B2+4, Tn)
        a(f"v_rcp_f32 v{E+r}, v{E+r}")
    sp(lo)
    for r in range(nreg // 2):
        a(f"v_pk_mul_f32 {vr(E+2*r,2)}, {vr(E+2*r,2)}, {vr(Tc+2*r,2)}")
    for r in range(nreg // 2):
        a(f"v_cvt_pk_bf16_f32 v{M+r}, v{E+2*r}, v{E+2*r+1}")
    if last:
        a("s_waitcnt lgkmcnt(0)")
        mfma(a, AGG, M, OH, AGG)
        if nreg == 16: mfma(a, AGG, M+4, OH+4, AGG)

def k2_main(a, sfx, pr):
    order = [3, 2, 4, 1, 5, 0, 6, 7, 8, 9, 10, 11, 12]
    a(f"s_bitcmp1_b32 s49, 0\ns_cbranch_scc1 K2_ODD{sfx}")
    for par in (0, 1):
        Td = T1 if par else T0
        if par: a(f"K2_ODD{sfx}:")
        mfma(a, Td, AP, ID, T0)
        mfma(a, Td, AP+4, ID+4, Td)
        a("s_nop 7\n@A6")
        es = [e for e in order if e % 2 == par]
        for e in es[:-1]:
            a(f"s_cmp_eq_u32 s49, {e}\ns_cbranch_scc1 K2_T{e}{sfx}")
        a(f"s_branch K2_T{es[-1]}{sfx}")
    for p in range(NT):
        a(f"K2_T{p}{sfx}:")
        if p == NT - 1 and HALF:
            a(f"s_cmp_lg_u32 s50, 0\ns_cbranch_scc1 K2_TH{sfx}")
        k2_tile(a, p, pr)
    if HALF:
        a(f"s_branch K2_DONE\nK2_TH{sfx}:")
        k2_tile(a, NT - 1, pr, 8)

def k2_addr_init(a):
    t = AP
    a(f"""
v_mul_u32_u24 v{vRA1}, 48, v{vN}
v_lshl_add_u32 v{vRA0}, v{vH}, 4, v{vRA1}
v_add_u32 v{vRA0}, {RB}, v{vRA0}
v_add_u32 v{vRA1}, {RB+32}, v{vRA1}
v_lshl_add_u32 v{vTR}, v{vH}, 2, v{vQ2}
v_mul_u32_u24 v{vTR}, 48, v{vTR}
v_bfe_u32 v{t}, v1, 4, 1
v_lshl_or_b32 v{t}, v{t}, 2, v{vQ}
v_lshl_add_u32 v{vTR}, v{t}, 3, v{vTR}
v_add_u32 v{vTR}, {RB}, v{vTR}
v_and_b32 v{vIX}, 60, v1
v_add_u32 v{vIX}, {IDX}, v{vIX}
v_xor_b32 v{vPA0}, v{vQ2}, v{vH}
v_lshlrev_b32 v{vPA0}, 4, v{vPA0}
v_lshl_or_b32 v{vPA0}, v{vN}, 6, v{vPA0}
v_add_u32 v{vPA0}, s53, v{vPA0}
v_xor_b32 v{vPA1}, 32, v{vPA0}
""")
    for r in range(8):
        a(f"v_mov_b32 v{M+r}, 0\nv_mov_b32 v{OH+r}, 0")

def k2_zero(a):
    for j in range(NZ):
        a(f"ds_write_b128 v{vZ}, {vr(M,4)} offset:{RB + 4096*j}")
    a(f"ds_write_b64 v{vCN}, {vr(M,2)}")

def k2(a):
    t = AR
    UB = XF + 16
    a(f"""
s_cmpk_ge_u32 s2, 512
s_cbranch_scc1 K2_END
@R0
@S1
s_load_dwordx2 s[24:25], s[0:1], 64
s_load_dwordx2 s[16:17], s[0:1], 32
s_load_dwordx2 s[20:21], s[0:1], 48
""")
    if CPF & 2:
        a(f"""
s_getpc_b64 s[4:5]
K2_PC:
v_lshlrev_b32 v1, 7, v0
s_mov_b32 s6, K2_END-K2_PC
v_cmp_gt_u32 vcc, s6, v1
s_cbranch_vccz K2_PF2
s_mov_b64 exec, vcc
global_load_dword v{RC}, v1, s[4:5]
s_mov_b64 exec, -1
K2_PF2:
""")
    a(f"""
v_lshrrev_b32 v{vH}, 6, v0
v_and_b32 v1, 63, v0
s_and_b32 s44, s2, 7
v_readfirstlane_b32 s47, v{vH}
s_lshl_b32 s44, s44, 6
s_lshr_b32 s43, s2, 3
s_add_u32 s44, s44, s43
v_lshrrev_b32 v{t}, 2, v0
v_lshlrev_b32 v{t+1}, 11, v{t}
s_lshl_b32 s3, s44, 2
s_add_u32 s3, s3, {TAB}
s_mov_b32 s34, {WS_SIZE}
s_mov_b32 s35, 0x00020000
s_mul_i32 s45, s44, 1280169
s_add_u32 s46, s45, {1280169+65535}
s_add_u32 s45, s45, 65535
s_lshr_b32 s45, s45, 16
s_lshr_b32 s46, s46, 16
s_min_u32 s46, s46, 10000
s_sub_u32 s46, s46, s45
s_movk_i32 s4, {CHE*12}
v_mul_u32_u24 v{vRB}, s4, v{t}
v_bfrev_b32 v{vOOB}, 2
v_lshrrev_b32 v{vH}, 5, v1
v_bfe_u32 v{vQ2}, v1, 2, 2
v_and_b32 v{vQ}, 3, v1
v_and_b32 v{vN}, 31, v1
s_lshl_b32 s5, s45, 8
s_lshl_b32 s4, s47, 6
s_add_u32 s5, s5, s4
v_lshrrev_b32 v{t+2}, 2, v1
v_lshlrev_b32 v{t+5}, 4, v{vQ}
v_lshl_or_b32 v{t+5}, v{t+2}, 8, v{t+5}
v_lshlrev_b32 v{t+6}, 5, v{vH}
v_lshl_or_b32 v{XF+24}, v{vN}, 8, v{t+6}
s_add_u32 s6, s5, {QW}
s_add_u32 s8, s5, {QW + 4096 - 1024}
s_add_u32 s9, s5, {UW}
s_lshl_b32 s7, s47, 11
s_add_u32 s7, s7, {XT}
s_mov_b32 m0, s7
s_add_u32 s4, s4, 65536
v_lshl_add_u32 v{t+7}, v{vN}, 1, s4
s_lshl_b32 s53, s47, 13
v_lshlrev_b32 v{vZ}, 4, v0
v_mov_b32 v{vCN}, {CNT}
s_mov_b32 s42, 66560
s_mov_b32 s43, 0x00020000
""")
    k2_addr_init(a)
    a(f"""
s_waitcnt lgkmcnt(0)
@S2
s_mov_b32 s32, s24
s_mov_b32 s33, s25
buffer_load_dword v{vEND}, v{t+1}, s[32:35], s3 offen
s_mov_b32 s40, s16
s_mov_b32 s41, s17
buffer_load_dwordx4 v{t+5}, s[32:35], s6 offen lds
s_mov_b64 exec, 0xffff
buffer_load_dwordx4 v{t+5}, s[32:35], s8 offen offset:1024 lds
s_mov_b64 exec, -1
""")
    for k in range(4):
        a(f"buffer_load_ushort v{W3R+k}, v{t+7}, s[40:43], 0 offen offset:{256*k}")
    k2_zero(a)
    srd(a, 36, 20, 2560000)
    a(f"""
v_lshlrev_b32 v{vWF}, 4, v1
s_add_u32 s54, s53, {WF}
s_add_u32 s55, s54, 0x1000
v_bfe_u32 v{t+2}, v1, 4, 2
v_xor_b32 v{vGC0}, v{vQ}, v{t+2}
s_lshl_b32 s4, s47, 6
v_lshl_add_u32 v{vGC0}, v{vGC0}, 4, s4
v_mov_b32 v{vGC1}, v{vGC0}
s_add_u32 s68, s24, {PW}
s_addc_u32 s69, s25, 0
s_or_b32 s69, s69, 0x1000000
s_mov_b32 s70, {PSTR}
s_mov_b32 s71, 0x00020000
v_lshl_add_u32 v{vXA}, v{vH}, 3, v{vQ2}
v_and_b32 v{t+2}, 1, v{t+2}
v_lshl_or_b32 v{t+2}, v{t+2}, 2, v{vQ}
v_lshlrev_b32 v{t+2}, 3, v{t+2}
v_lshl_or_b32 v{vXA}, v{vXA}, 6, v{t+2}
v_add_u32 v{vXA}, s7, v{vXA}
v_lshrrev_b32 v{t}, 1, v{vN}
v_lshlrev_b32 v{t+1}, 2, v{vH}
v_sub_u32 v{t}, v{t}, v{t+1}
v_and_b32 v{t+1}, 1, v1
v_lshlrev_b32 v{t+1}, 4, v{t+1}
v_mov_b32 v{t+2}, 0x3f80
v_lshlrev_b32 v{t+1}, v{t+1}, v{t+2}
""")
    for j in range(2):
        for u in range(4):
            a(f"v_cmp_eq_u32 vcc, {8*j+u}, v{t}")
            a(f"v_mov_b32 v{AGG+8*j+2*u}, 0\nv_mov_b32 v{AGG+8*j+2*u+1}, 0")
            a(f"v_cndmask_b32 v{ID+4*j+u}, 0, v{t+1}, vcc")
    a(f"""
s_mov_b32 s3, {REC}
@B3
s_waitcnt lgkmcnt(0)
s_barrier
@B4
s_waitcnt vmcnt(6)
@A3
v_and_b32 v{vCUR}, 0xffff, v{vEND}
v_lshrrev_b32 v{vEND}, 16, v{vEND}
v_add_u32 v{vCUR}, v{vCUR}, v{vQ}
K2_ROUND:
@B5
v_sub_u32 v{t+1}, v{vEND}, v{vCUR}
v_mad_u32_u24 v{t}, v{vCUR}, 12, v{vRB}
""")
    for i in range(NR):
        a(f"v_cmp_lt_i32 s[{56+2*i}:{57+2*i}], {4*i}, v{t+1}")
    for i in range(NR):
        a(f"""
v_cndmask_b32 v{t+2+i}, v{vOOB}, v{t}, s[{56+2*i}:{57+2*i}]
buffer_load_dwordx3 {vr(RC+4*i,3)}, v{t+2+i}, s[32:35], s3 offen offset:{48*i}
""")
    a("s_mov_b64 exec, 1")
    for i in range(NR):
        a(f"s_bcnt1_i32_b64 s{11+i}, s[{56+2*i}:{57+2*i}]")
    for i in range(1, NR):
        a(f"s_add_u32 s{11+i}, s{11+i}, s{10+i}")
    a(f"""
v_mov_b32 v{t}, s{10+NR}
ds_add_rtn_u32 v{t}, v{vCN}, v{t}
s_mov_b64 exec, -1
""")
    for i in range(NR):
        a(f"v_mbcnt_lo_u32_b32 v{RC+4*i+3}, s{56+2*i}, 0\nv_mbcnt_hi_u32_b32 v{RC+4*i+3}, s{57+2*i}, v{RC+4*i+3}")
    a(f"""
s_waitcnt lgkmcnt(0)
v_readfirstlane_b32 s10, v{t}
v_mov_b32 v{t+1}, 0x3f80
s_movk_i32 s4, {CAP}
""")
    for i in range(1, NR):
        a(f"s_add_u32 s{10+i}, s{10+i}, s10")
    for i in range(NR):
        p = RC + 4*i + 3
        a(f"""
v_add_u32 v{p}, s{10+i}, v{p}
v_cmp_gt_u32 vcc, s4, v{p}
s_and_b64 s[{56+2*i}:{57+2*i}], vcc, s[{56+2*i}:{57+2*i}]
v_mul_u32_u24 v{t+2+i}, 48, v{p}
v_lshlrev_b32 v{p}, 2, v{p}
""")
    a(f"""
s_waitcnt vmcnt({NR})
ds_read_b64_tr_b16 {vr(B2,2)}, v{vXA}
ds_read_b64_tr_b16 {vr(B2+2,2)}, v{vXA} offset:256
ds_read_b64_tr_b16 {vr(B2+4,2)}, v{vXA} offset:1024
s_mov_b32 s4, 0x{NLOG2E:08x}
""")
    for k in range(4):
        a(f"v_lshlrev_b32 v{E+k}, 16, v{W3R+k}\nv_mul_f32 v{E+k}, s4, v{E+k}")
    a(f"""
v_cvt_pk_bf16_f32 v{E+4}, v{E}, v{E+1}
v_cvt_pk_bf16_f32 v{E+5}, v{E+2}, v{E+3}
v_lshlrev_b32 v{E+6}, 16, v{E+4}
v_and_b32 v{E+7}, 0xffff0000, v{E+4}
v_lshlrev_b32 v{E+8}, 16, v{E+5}
v_and_b32 v{E+9}, 0xffff0000, v{E+5}
v_sub_f32 v{E}, v{E}, v{E+6}
v_sub_f32 v{E+1}, v{E+1}, v{E+7}
v_sub_f32 v{E+2}, v{E+2}, v{E+8}
v_sub_f32 v{E+3}, v{E+3}, v{E+9}
v_cmp_eq_u32 vcc, 0, v{vH}
v_cvt_pk_bf16_f32 v{E+6}, v{E}, v{E+1}
v_cvt_pk_bf16_f32 v{E+7}, v{E+2}, v{E+3}
v_cndmask_b32 v{B2+6}, v{E+6}, v{E+4}, vcc
v_cndmask_b32 v{B2+7}, v{E+7}, v{E+5}, vcc
""")
    a(f"""
s_waitcnt lgkmcnt(0)
v_cndmask_b32 v{B2+4}, 0, v{B2+4}, vcc
v_cndmask_b32 v{B2+5}, 0, v{B2+5}, vcc
v_mov_b32 v{E+1}, v{vGC0}
v_mov_b32 v{E+3}, v{vGC0}
v_mov_b32 v{E+5}, v{vGC0}
v_mov_b32 v{E+7}, v{vGC0}
@B6
""")
    for i in range(NR):
        p = RC + 4*i + 3
        a(f"s_mov_b64 exec, s[{56+2*i}:{57+2*i}]")
        if i >= 2: a(f"s_cbranch_execz K2_RB_DONE")
        a(f"""
v_add_u32 v{vCUR}, 4, v{vCUR}
s_waitcnt vmcnt({NR-1-i})
v_lshrrev_b32 v{t}, 8, v{RC+4*i+2}
ds_write_b32 v{p}, v{t} offset:{IDX}
v_and_b32 v{RC+4*i+2}, 0xff, v{RC+4*i+2}
v_add_u32 v{RC+4*i+2}, v{RC+4*i+2}, v{t+2+i}
ds_write_b64 v{t+2+i}, {vr(RC+4*i,2)} offset:{RB+40}
ds_write_b16 v{RC+4*i+2}, v{t+1} offset:{RB}
""")
    IR = T1
    a(f"""
K2_RB_DONE:
s_mov_b64 exec, -1
v_cmp_lt_u32 vcc, v{vCUR}, v{vEND}
s_mov_b64 exec, vcc
ds_write_b32 v{vCN}, v{t+1} offset:4
s_mov_b64 exec, -1
@B7
@A4
s_waitcnt lgkmcnt(0)
s_barrier
@A5
""")
    a(f"""
ds_read_b32 v{vG0}, v{vIX}
ds_read_b32 v{vG1}, v{vIX} offset:64
ds_read_b64 {vr(IR+10,2)}, v{vCN}
ds_read_b32 v{E}, v{vIX} offset:128
ds_read_b32 v{E+2}, v{vIX} offset:192
ds_read_b128 {vr(AR,4)}, v{vRA0}
ds_read_b128 {vr(AR+4,4)}, v{vRA1}
ds_read_b32 v{E+4}, v{vIX} offset:256
ds_read_b32 v{E+6}, v{vIX} offset:320
s_add_u32 m0, s53, 4096
s_waitcnt lgkmcnt(8)
buffer_load_dwordx4 v[{vG0}:{vGC0}], s[68:71], 0 idxen offen lds
s_add_u32 m0, s53, 5120
s_waitcnt lgkmcnt(7)
buffer_load_dwordx4 v[{vG1}:{vGC1}], s[68:71], 0 idxen offen lds
s_waitcnt lgkmcnt(6)
v_readfirstlane_b32 s48, v{IR+10}
v_readfirstlane_b32 s51, v{IR+11}
s_min_u32 s48, s48, {CAP}
s_max_u32 s48, s48, 1
s_add_u32 s4, s48, 31
s_lshr_b32 s48, s4, 5
s_sub_u32 s49, {NT}, s48
s_bfe_u32 s50, s4, 0x10004
s_xor_b32 s50, s50, 1
s_and_b32 s4, s49, 1
s_lshl_b32 s4, s4, 11
s_add_u32 s52, s53, s4
s_xor_b32 m0, s52, 0x800
s_waitcnt lgkmcnt(5)
buffer_load_dwordx4 v[{E}:{E+1}], s[68:71], 0 idxen offen lds
s_xor_b32 m0, s52, 0xc00
s_waitcnt lgkmcnt(4)
buffer_load_dwordx4 v[{E+2}:{E+3}], s[68:71], 0 idxen offen lds
s_mul_i32 s4, s49, 1536
s_lshl_b32 s6, s49, 7
s_waitcnt lgkmcnt(2)
""")
    mfma(a, T0, AR, B2)
    mfma(a, T0, AR+4, B2+4, T0)
    a(f"""
v_subrev_u32 v{vRA0}, s4, v{vRA0}
v_subrev_u32 v{vRA1}, s4, v{vRA1}
v_subrev_u32 v{vTR}, s4, v{vTR}
v_subrev_u32 v{vIX}, s6, v{vIX}
s_mov_b32 m0, s52
@B8
s_waitcnt vmcnt(2) lgkmcnt(0)
@B9
ds_read_b128 {vr(AP,4)}, v{vPA0} offset:4096
ds_read_b128 {vr(AP+4,4)}, v{vPA1} offset:4096
buffer_load_dwordx4 v[{E+4}:{E+5}], s[68:71], 0 idxen offen lds
s_add_u32 m0, s52, 0x400
s_cmp_lt_u32 s49, {NT-DP+1}
buffer_load_dwordx4 v[{E+6}:{E+7}], s[68:71], 0 idxen offen lds
s_cbranch_scc1 K2_NWU
""")
    wu_loads(a)
    a("K2_NWU:\ns_waitcnt lgkmcnt(0)")
    if len(PRIO) == 2:
        a("s_cmpk_ge_u32 s2, 256\ns_cbranch_scc1 K2_MB")
        k2_main(a, "A", PRIO[0])
        a("s_branch K2_DONE\nK2_MB:")
        k2_main(a, "B", PRIO[1])
    else:
        k2_main(a, "A", PRIO[0])
    a("K2_DONE:\n@A7")
    a(f"""
s_waitcnt vmcnt(0)
s_cmp_eq_u32 s51, 0
s_cbranch_scc1 K2_EPI
s_barrier
""")
    k2_addr_init(a)
    k2_zero(a)
    a(f"""
s_waitcnt lgkmcnt(0)
s_barrier
s_branch K2_ROUND
K2_EPI:
@A8
""")
    a(f"s_mov_b32 s6, 0x{NLN2:08x}")
    for r in range(8):
        a(f"v_lshlrev_b32 v{XF+2*r}, 16, v{UB+r}\nv_and_b32 v{XF+2*r+1}, 0xffff0000, v{UB+r}")
    for r in range(16):
        a(f"v_mul_f32 v{AGG+r}, s6, v{AGG+r}")
    for r in range(8):
        a(f"v_cvt_pk_bf16_f32 v{M+r}, v{AGG+2*r}, v{AGG+2*r+1}")
    a(f"""
v_add_u32 v232, s53, v{vWF}
ds_write_b128 v232, {vr(M,4)}
ds_write_b128 v232, {vr(M+4,4)} offset:1024
s_waitcnt lgkmcnt(0)
s_barrier
@A9
""")
    for s in range(8):
        a(f"ds_read_b128 {vr(T1+4*s,4)}, v{vWF} offset:{8192*(s>>1) + 1024*(s&1)}")
    a(f"""
v_lshlrev_b32 v232, 1, v{vH}
v_xor_b32 v232, v232, v252
v_lshlrev_b32 v232, 4, v232
v_lshl_or_b32 v232, v248, 6, v232
v_add_u32 v232, s53, v232
v_xor_b32 v233, 16, v232
v_lshrrev_b32 v228, 2, v1
v_bfe_u32 v229, v1, 4, 2
v_xor_b32 v229, v229, v253
v_lshlrev_b32 v229, 4, v229
v_lshl_or_b32 v229, v228, 6, v229
v_add_u32 v229, s53, v229
v_lshlrev_b32 v230, 4, v253
v_lshl_or_b32 v230, v228, 8, v230
v_add_u32 v230, s5, v230
v_add_u32 v231, 0x1000, v230
v_add_u32 v234, 16, v228
v_cmp_gt_u32 s[56:57], s46, v228
v_cmp_gt_u32 s[58:59], s46, v234
s_mov_b32 s6, 0x{NLOG2E:08x}
""")
    for s in range(8):
        a(f"s_waitcnt lgkmcnt({7-s})")
        mfma(a, XF, WU+4*s, T1+4*s, XF)
    a("s_nop 7\ns_nop 7")
    for r in range(16):
        a(f"v_mul_f32 v{E+r}, s6, v{XF+r}")
    for r in range(16):
        a(f"v_exp_f32 v{E+r}, v{E+r}")
    for r in range(8):
        a(f"v_pk_add_f32 {vr(E+2*r,2)}, {vr(E+2*r,2)}, 1.0 op_sel_hi:[1,0]")
    for r in range(16):
        a(f"v_rcp_f32 v{E+r}, v{E+r}")
    for r in range(8):
        a(f"v_pk_mul_f32 {vr(E+2*r,2)}, {vr(E+2*r,2)}, {vr(XF+2*r,2)}")
    for r in range(8):
        a(f"v_cvt_pk_bf16_f32 v{M+r}, v{E+2*r}, v{E+2*r+1}")
    a(f"""
ds_write_b128 v232, {vr(M,4)} offset:2048
ds_write_b128 v233, {vr(M+4,4)} offset:2048
s_waitcnt lgkmcnt(0)
ds_read_b128 {vr(AP,4)}, v229 offset:2048
ds_read_b128 {vr(AP+4,4)}, v229 offset:3072
s_mov_b64 exec, s[56:57]
s_waitcnt lgkmcnt(1)
buffer_store_dwordx4 {vr(AP,4)}, v230, s[36:39], 0 offen{K2SC}
s_mov_b64 exec, s[58:59]
s_waitcnt lgkmcnt(0)
buffer_store_dwordx4 {vr(AP+4,4)}, v231, s[36:39], 0 offen{K2SC}
@P1
K2_END:
s_endpgm
""")

def desc(name, vg):
    return f""".amdhsa_kernel {name}
  .amdhsa_next_free_vgpr {vg}
  .amdhsa_next_free_sgpr 96
  .amdhsa_accum_offset {vg}
  .amdhsa_group_segment_fixed_size 0
  .amdhsa_kernarg_size 72
  .amdhsa_user_sgpr_count 2
  .amdhsa_user_sgpr_kernarg_segment_ptr 1
  .amdhsa_system_sgpr_workgroup_id_x 1
.end_amdhsa_kernel
"""

def main(out):
    ref = open(f"cdna_kernels/{NAME}.s.ref").read().split("\n")
    hdr = [l for l in ref if l.startswith(";") and "@launch" not in l and "Override" not in l and "grid=ceil" not in l]
    k1n, k2n = "mpnn_prep_kernel", f"{NAME}_kernel"
    t = "\n".join(hdr) + "\n"
    t += f"; @launch kernel={k1n} grid=({K1_GRID},1,1) block=(640,1,1) lds={K1_LDS}\n"
    t += f"; @launch kernel={k2n} grid=(512,1,1) block=(256,1,1) lds={K2_LDS}\n"
    t += '.amdgcn_target "amdgcn-amd-amdhsa--gfx950"\n.text\n'
    for n, f in ((k1n, k1), (k2n, k2)):
        a = A(); f(a)
        t += f".globl {n}\n.p2align 8\n.type {n},@function\n{n}:\n" + a.text()
    t += '.section .rodata,"a"\n.p2align 6\n' + desc(k1n, 160) + ".p2align 6\n" + desc(k2n, 256)
    open(out, "w").write(t)

if __name__ == "__main__":
    main(sys.argv[1] if len(sys.argv) > 1 else f"cdna_kernels/{NAME}.s")
```
